```python
import torch

def _softmax(x, axis=-1):
    return torch.softmax(x, dim=axis)

def _gelu(x):
    return torch.nn.functional.gelu(x, approximate='tanh')

def _silu(x):
    return torch.nn.functional.silu(x)

def _sigmoid(x):
    return torch.sigmoid(x)

def _layernorm(x, axis=-1, eps=1e-05):
    m = x.mean(dim=axis, keepdim=True)
    v = x.var(dim=axis, keepdim=True, unbiased=False)
    return (x - m) / torch.sqrt(v + eps)

def _scatter_add(tgt, idx, src, axis=0):
    return tgt.clone().index_add_(axis, idx, src)

def _segment_sum(src, seg, n):
    out = torch.zeros((n,) + src.shape[1:], dtype=src.dtype)
    return out.index_add_(0, seg, src)

def _pad(x, pw):
    flat = tuple((v for pair in reversed(pw) for v in pair))
    return torch.nn.functional.pad(x, flat)
kernel_name = 'standalone__kv_cache_quant_pre_rope_vs_post_rope__prompt'

def setup_inputs():

    _w = lambda a: (lambda t: t.to(torch.bfloat16) if t.is_floating_point() else t)(torch.as_tensor(a))
    B, Sq, Skv = (1, 2048, 2048)
    H, Dh0 = (8, 256)
    G = 64 if 64 > 0 else Dh0
    G = max(2, G // 2 * 2)
    Dh = max(G, Dh0 // G * G)
    Skv = max(Skv, Sq)
    ng = Dh // G
    bits = 8 if 8 > 1 else 4
    bits = max(2, min(8, bits))
    qmax = (1 << bits) - 1
    half = Dh // 2
    inv = 1.0 / 10000.0 ** (torch.arange(half) / max(1, half))
    ang_k = torch.arange(Skv)[:, None] * inv[None, :]
    ang_q = torch.arange(Skv - Sq, Skv)[:, None] * inv[None, :]
    kc = torch.cat([torch.cos(ang_k), torch.cos(ang_k)], dim=-1)
    ks = torch.cat([torch.sin(ang_k), torch.sin(ang_k)], dim=-1)
    qc = torch.cat([torch.cos(ang_q), torch.cos(ang_q)], dim=-1)
    qs = torch.cat([torch.sin(ang_q), torch.sin(ang_q)], dim=-1)
    qk_i = torch.randint(0, qmax + 1, (B, H, Skv, Dh)).to(torch.int32)
    qv_i = torch.randint(0, qmax + 1, (B, H, Skv, Dh)).to(torch.int32)
    ksc = torch.abs((lambda *s: torch.randn(*s, dtype=torch.bfloat16) * 0.05)(B, H, Skv, ng)) * 0.1 + 0.01
    kzp = torch.full((B, H, Skv, ng), qmax / 2.0)
    vsc = torch.abs((lambda *s: torch.randn(*s, dtype=torch.bfloat16) * 0.05)(B, H, Skv, ng)) * 0.1 + 0.01
    vzp = torch.full((B, H, Skv, ng), qmax / 2.0)
    return {'q': _w((lambda *s: torch.randn(*s, dtype=torch.bfloat16) * 0.8)(B, H, Sq, Dh) * 0.5), 'qk': _w(qk_i), 'k_scales': _w(ksc), 'k_zeros': _w(kzp), 'qv': _w(qv_i), 'v_scales': _w(vsc), 'v_zeros': _w(vzp), 'q_cos': _w(qc), 'q_sin': _w(qs), 'k_cos': _w(kc), 'k_sin': _w(ks)}

def reference(q, qk, k_scales, k_zeros, qv, v_scales, v_zeros, q_cos, q_sin, k_cos, k_sin):
    B, H, Sq, Dh = q.shape
    ng = k_scales.shape[-1]
    G = Dh // ng
    half = Dh // 2
    ks = (lambda x, n, axis: torch.repeat_interleave(x, n, dim=axis))(k_scales, G, axis=-1)
    kz = (lambda x, n, axis: torch.repeat_interleave(x, n, dim=axis))(k_zeros, G, axis=-1)
    k = ((lambda x, dt: x.to(dt))(qk, q.dtype) - kz) * ks
    vs = (lambda x, n, axis: torch.repeat_interleave(x, n, dim=axis))(v_scales, G, axis=-1)
    vz = (lambda x, n, axis: torch.repeat_interleave(x, n, dim=axis))(v_zeros, G, axis=-1)
    v = ((lambda x, dt: x.to(dt))(qv, q.dtype) - vz) * vs
    k1 = k[..., :half].clone()
    k2 = k[..., half:].clone()
    krh = torch.concatenate([-k2, k1], axis=-1)
    kr = k * k_cos[None, None, :, :] + krh * k_sin[None, None, :, :]
    q1 = q[..., :half].clone()
    q2 = q[..., half:].clone()
    qrh = torch.concatenate([-q2, q1], axis=-1)
    qr = q * q_cos[None, None, :, :] + qrh * q_sin[None, None, :, :]
    logits = torch.einsum('bhqd,bhkd->bhqk', qr, kr) * float(Dh) ** (-0.5)
    attn = _softmax(logits, axis=-1)
    out = torch.einsum('bhqk,bhkd->bhqd', attn, v)
    return out
```

```python
class Asm:
    def __init__(self):
        self.lines = []
    def __call__(self, s):
        for ln in s.split('\n'):
            self.lines.append(ln)
    def text(self):
        return '\n'.join(self.lines) + '\n'

def kernel_desc(name, vgpr, sgpr, accum, extra=''):
    return f""".section .rodata,"a"
.p2align 6
.amdhsa_kernel {name}
  .amdhsa_next_free_vgpr {vgpr}
  .amdhsa_next_free_sgpr {sgpr}
  .amdhsa_accum_offset {accum}
  .amdhsa_group_segment_fixed_size 0
  .amdhsa_kernarg_size 112
  .amdhsa_user_sgpr_count 2
  .amdhsa_user_sgpr_kernarg_segment_ptr 1
  .amdhsa_system_sgpr_workgroup_id_x 1
{extra}.end_amdhsa_kernel
"""

def vr(base, n):
    return f"v[{base}:{base+n-1}]" if n > 1 else f"v{base}"
def ar(base, n):
    return f"a[{base}:{base+n-1}]" if n > 1 else f"a{base}"
def sr(base, n):
    return f"s[{base}:{base+n-1}]" if n > 1 else f"s{base}"
```

```python
import re
REG = re.compile(r'^(-|abs\()?([vas])(?:\[(\d+):(\d+)\]|(\d+))\)?$')
def regs(op):
    op = op.strip()
    if op in ('vcc',): return {('s', 'vcc')}
    if op == 'exec': return {('s', 'exec')}
    if op == 'm0': return {('s', 'm0')}
    m = REG.match(op)
    if not m: return set()
    k = m.group(2)
    if m.group(3) is not None: return {(k, i) for i in range(int(m.group(3)), int(m.group(4)) + 1)}
    return {(k, int(m.group(5)))}
TRANS = ('v_exp_f32', 'v_log_f32', 'v_rcp_f32', 'v_rsq_f32', 'v_sqrt_f32', 'v_sin_f32', 'v_cos_f32')
def parse(line):
    line = line.split(';')[0].strip()
    if not line or line.endswith(':') or line.startswith('.'): return None
    parts = line.split(None, 1)
    mn = parts[0]
    ops = [o.strip() for o in parts[1].split(',')] if len(parts) > 1 else []
    if ops:
        last = ops[-1].split()
        ops[-1] = last[0] if last else ''
    d = dict(mn=mn, text=line, w=set(), r=set(), kind='other', states=1, srcc=set(), ab=set())
    R = [regs(o) for o in ops]
    if mn == 's_nop': d['states'] = int(ops[0]) + 1
    elif mn.startswith('v_mfma'):
        d['kind'] = 'mfma'; d['w'] = R[0]; d['ab'] = R[1] | R[2]; d['srcc'] = R[3]; d['r'] = R[1] | R[2] | R[3]
        d['passes'] = 4 if '16x16x32' in mn else 8
    elif mn.startswith('v_cmp'):
        d['kind'] = 'valu'; d['w'] = R[0]; d['r'] = set().union(*R[1:])
    elif mn.startswith('v_permlane') and 'swap' in mn:
        d['kind'] = 'permlane'; d['w'] = R[0] | R[1]; d['r'] = R[0] | R[1]
    elif mn.startswith('v_readfirstlane') or mn.startswith('v_readlane'):
        d['kind'] = 'readlane'; d['w'] = R[0]; d['r'] = set().union(*R[1:])
    elif mn.startswith('v_'):
        d['kind'] = 'valu'; d['w'] = R[0]; d['r'] = set().union(*R[1:]) if len(R) > 1 else set()
        if mn.startswith(('v_fmac', 'v_dot2c')): d['r'] |= R[0]
        if mn.startswith('v_cndmask') and len(ops) == 3: d['r'] |= {('s', 'vcc')}
        if mn.startswith(TRANS): d['trans'] = True
        if mn.startswith('v_dot2'): d['dot'] = True
        if 'dpp' in line or 'row_' in line or 'quad_perm' in line: d['dpp'] = True
    elif mn.startswith(('buffer_load', 'global_load')):
        d['kind'] = 'vmem'
        if ' lds' in line: d['r'] = set().union(*R)
        else: d['w'] = R[0]; d['r'] = set().union(*R[1:])
    elif mn.startswith(('buffer_store', 'global_store', 'buffer_atomic', 'global_atomic')):
        d['kind'] = 'vmem'; d['r'] = set().union(*R)
        if mn.startswith('buffer_store') and ('x4' in mn or 'x3' in mn): d['wide'] = R[0]
        if mn.startswith('global_store') and ('x4' in mn or 'x3' in mn): d['wide'] = R[1]
    elif mn.startswith('ds_read') or mn.startswith('ds_bpermute'):
        d['kind'] = 'ds'; d['w'] = R[0]; d['r'] = set().union(*R[1:])
    elif mn.startswith('ds_'):
        d['kind'] = 'ds'; d['r'] = set().union(*R)
    elif mn.startswith('s_'):
        d['kind'] = 'salu'
        if R: d['w'] = R[0]; d['r'] = set().union(*R[1:]) if len(R) > 1 else set()
    return d
def check(lines, name=''):
    ins = [p for p in (parse(l) for l in lines) if p]
    errs = []
    for i, a in enumerate(ins):
        dist = 0
        for j in range(i + 1, min(i + 24, len(ins))):
            b = ins[j]
            need = 0
            isvalu_a = a['kind'] in ('valu', 'permlane', 'readlane')
            isvalu_b = b['kind'] in ('valu', 'permlane', 'readlane')
            if a['kind'] == 'mfma':
                p = a['passes']; big = 8 if p == 4 else 12
                if b['kind'] == 'mfma':
                    if a['w'] & b['ab']: need = big
                    if a['w'] & b['srcc'] and not (a['w'] == b['srcc'] and b['passes'] == p): need = max(need, 6 if p == 4 else 10)
                elif isvalu_b and (a['w'] & (b['r'] | b['w'])): need = big
                elif b['kind'] in ('vmem', 'ds') and (a['w'] & (b['r'] | b['w'])): need = big
                if isvalu_b and (a['srcc'] & b['w']): need = max(need, 3 if p == 4 else 7)
            if isvalu_a:
                vw = {x for x in a['w'] if x[0] in 'va'}; sw = {x for x in a['w'] if x[0] == 's'}
                if b['kind'] == 'mfma' and vw & b['r']: need = max(need, 2)
                if b['kind'] == 'permlane' and vw & b['r']: need = max(need, 2)
                if b.get('dpp') and vw & b['r']: need = max(need, 2)
                if b['kind'] == 'readlane' and vw & b['r']: need = max(need, 1)
                if a.get('trans') and isvalu_b and not b.get('trans') and vw & b['r']: need = max(need, 1)
                if a.get('dot') and isvalu_b and vw & (b['r'] | b['w']): need = max(need, 3)
                if a.get('dot') and b['kind'] in ('ds', 'vmem') and vw & b['r']: need = max(need, 3)
                if sw and isvalu_b and sw & b['r']: need = max(need, 2)
                if sw and b['kind'] == 'vmem' and sw & b['r']: need = max(need, 5)
                if sw and b['kind'] == 'salu' and sw & b['r']: need = max(need, 1)
            if a.get('wide') and (isvalu_b or b['kind'] == 'mfma') and a['wide'] & b['w']: need = max(need, 2)
            if a.get('wide') and b['kind'] in ('ds', 'vmem') and a['wide'] & b['w']: need = max(need, 1)
            if a['kind'] == 'salu' and ('s', 'm0') in a['w'] and b['kind'] == 'vmem' and ' lds' in b['text']: need = max(need, 1)
            if need > dist:
                errs.append(f'{name} hazard: need {need} have {dist}: [{a["text"]}] -> [{b["text"]}]')
            dist += b['states']
            if dist >= 20: break
    return errs
```

```python
import sys
from asmlib import *
import hazcheck

NAME = 'standalone__kv_cache_quant_pre_rope_vs_post_rope__prompt'
CSCALE = 0x3db8aa3b
SEL_E = 0x05040100
SEL_O = 0x07060302
STAMP_OFF = 128 << 20

class VM:
    def __init__(self, a): self.a = a; self.ops = []
    def issue(self, text, tag=None):
        self.a(text); self.ops.append(tag)
    def wait(self, *tags):
        last = max(i for i, t in enumerate(self.ops) if t in tags)
        n = len(self.ops) - 1 - last
        self.a(f's_waitcnt vmcnt({min(n,63)})')

def srd(a, base, kaoff, nbytes):
    a(f's_load_dwordx2 s[{base}:{base+1}], s[0:1], {kaoff}')
    return [f's_mov_b32 s{base+2}, {nbytes}', f's_mov_b32 s{base+3}, 0x00020000']

def stamp(a, on, idx):
    if on: a(f's_memrealtime s[{64+2*idx}:{65+2*idx}]')

def stamp_flush(a, on, n, srdws, swave, slot0, vtmp):
    if not on: return
    a('s_waitcnt lgkmcnt(0)')
    a(f's_lshl_b32 s60, s2, 2\ns_add_u32 s60, s60, {swave}\ns_lshl_b32 s60, s60, 7\ns_add_u32 s60, s60, {STAMP_OFF + slot0*8}')
    a(f's_mov_b32 s{srdws+2}, 0x10000000')
    a(f'v_mov_b32 v{vtmp}, 0')
    for i in range(n):
        a(f'v_mov_b32 v{vtmp+2}, s{64+2*i}\nv_mov_b32 v{vtmp+3}, s{65+2*i}')
        a(f'buffer_store_dwordx2 v[{vtmp+2}:{vtmp+3}], v{vtmp}, s[{srdws}:{srdws+3}], s60 offen offset:{8*i}')
        a('s_waitcnt vmcnt(0)')

def gen_prep(a, o):
    st = o.get('stamps')
    STK = o.get('prep_store', '')
    LDA = o.get('prep_load', '')
    a('.globl prep_kernel\n.p2align 8\n.type prep_kernel,@function\nprep_kernel:')
    a('s_cmp_ge_u32 s2, 256\ns_cbranch_scc1 Lp_done')
    stamp(a, st, 0)
    QK, KS, KZ, QV, VS, VZ, KC, KN, WS = 8, 12, 16, 20, 24, 28, 32, 36, 40
    post = []
    post += srd(a, QK, 8, 16 << 20); post += srd(a, KS, 16, 128 << 10); post += srd(a, KZ, 24, 128 << 10)
    post += srd(a, QV, 32, 16 << 20); post += srd(a, VS, 40, 128 << 10); post += srd(a, VZ, 48, 128 << 10)
    post += srd(a, KC, 72, 1 << 20); post += srd(a, KN, 80, 1 << 20); post += srd(a, WS, 104, 16 << 20)
    for s in post: a(s)
    vA, vB, vC, vD, vE, vL, vSel, vW0, vRe, vRo, vT = 1, 2, 3, 4, 5, 6, 7, 8, 9, 10, 11
    a('v_lshrrev_b32 v11, 6, v0\nv_and_b32 v0, 63, v0')
    a('v_lshlrev_b32 v6, 4, v0')
    a('v_readfirstlane_b32 s44, v11')
    a('v_lshrrev_b32 v12, 5, v0\nv_and_b32 v13, 31, v0')
    a('v_lshlrev_b32 v1, 13, v12\nv_lshl_add_u32 v1, v13, 4, v1')
    a('v_lshlrev_b32 v2, 12, v12\nv_lshl_add_u32 v2, v13, 3, v2')
    a('v_lshlrev_b32 v3, 6, v12')
    a('v_lshrrev_b32 v14, 4, v0\nv_and_b32 v15, 15, v0')
    a('v_lshlrev_b32 v4, 12, v14\nv_lshl_add_u32 v4, v15, 4, v4')
    a('v_lshlrev_b32 v5, 5, v14')
    a('s_and_b32 s45, s2, 7\ns_lshr_b32 s46, s2, 3\ns_and_b32 s47, s46, 7\ns_lshl_b32 s45, s45, 3\ns_add_u32 s45, s45, s47')
    a('s_lshr_b32 s46, s46, 3\ns_lshl_b32 s46, s46, 1\ns_lshr_b32 s47, s44, 1\ns_add_u32 s46, s46, s47')
    a('s_and_b32 s47, s44, 1')
    a('s_lshl_b32 s48, s46, 11\ns_lshl_b32 s49, s45, 5\ns_add_u32 s48, s48, s49')
    a('s_lshl_b32 s50, s47, 4')
    a('s_add_u32 s51, s48, s50')
    a('s_lshl_b32 s52, s51, 10\ns_add_u32 s53, s52, 4096')
    a('s_add_u32 s54, s49, s50\ns_lshl_b32 s54, s54, 9')
    a('s_lshl_b32 s55, s51, 3')
    a('s_lshl_b32 s56, s48, 10\ns_lshl_b32 s57, s47, 9\ns_add_u32 s56, s56, s57\ns_add_u32 s57, s56, 16384')
    a('s_lshl_b32 s58, s48, 3\ns_lshl_b32 s59, s47, 2\ns_add_u32 s58, s58, s59')
    a('s_waitcnt lgkmcnt(0)')
    vm = VM(a)
    BLK = 128
    rKS, rKZ, rVS, rVZ = 64, 80, 96, 112
    for i in range(4): vm.issue(f'buffer_load_dwordx4 {vr(rKS+4*i,4)}, v{vC}, s[{KS}:{KS+3}], s55 offen offset:{16*i}', 'ks')
    for i in range(4): vm.issue(f'buffer_load_dwordx4 {vr(rKZ+4*i,4)}, v{vC}, s[{KZ}:{KZ+3}], s55 offen offset:{16*i}', 'ks')
    for p in range(8):
        B = BLK + 16 * p
        so = 's52' if p < 4 else 's53'
        vm.issue(f'buffer_load_dwordx4 {vr(B,4)}, v{vA}, s[{QK}:{QK+3}], {so} offen offset:{(p%4)*1024}{LDA}', f'k{p}')
        vm.issue(f'buffer_load_dwordx4 {vr(B+4,4)}, v{vA}, s[{QK}:{QK+3}], {so} offen offset:{(p%4)*1024+512}{LDA}', f'k{p}')
        vm.issue(f'buffer_load_dwordx2 {vr(B+8,2)}, v{vB}, s[{KC}:{KC+3}], s54 offen offset:{p*512}', f'k{p}')
        vm.issue(f'buffer_load_dwordx2 {vr(B+10,2)}, v{vB}, s[{KC}:{KC+3}], s54 offen offset:{p*512+256}', f'k{p}')
        vm.issue(f'buffer_load_dwordx2 {vr(B+12,2)}, v{vB}, s[{KN}:{KN+3}], s54 offen offset:{p*512}', f'k{p}')
        vm.issue(f'buffer_load_dwordx2 {vr(B+14,2)}, v{vB}, s[{KN}:{KN+3}], s54 offen offset:{p*512+256}', f'k{p}')
    for i in range(4): vm.issue(f'buffer_load_dwordx4 {vr(rVS+4*i,4)}, v{vE}, s[{VS}:{VS+3}], s58 offen offset:{(i>>1)*128+(i&1)*16}', 'vs')
    for i in range(4): vm.issue(f'buffer_load_dwordx4 {vr(rVZ+4*i,4)}, v{vE}, s[{VZ}:{VZ+3}], s58 offen offset:{(i>>1)*128+(i&1)*16}', 'vs')
    a('v_lshrrev_b32 v16, 4, v13')
    a('v_mul_u32_u24 v16, 0x0202, v16\nv_lshlrev_b32 v16, 16, v16\nv_add_u32 v7, 0x01000c0c, v16')
    a('v_lshrrev_b32 v16, 3, v13\nv_bfe_u32 v17, v13, 1, 2\nv_and_b32 v18, 1, v13')
    a('v_lshlrev_b32 v8, 10, v16\nv_lshl_add_u32 v8, v17, 8, v8\nv_lshl_add_u32 v8, v12, 7, v8\nv_lshl_add_u32 v8, v18, 3, v8')
    a('v_and_b32 v16, 1, v16\nv_lshl_add_u32 v16, v16, 2, v17\nv_lshl_add_u32 v8, v16, 4, v8')
    a('s_lshl_b32 s59, s44, 13\nv_add_u32 v8, s59, v8')
    a('v_xor_b32 v16, v15, v14\nv_lshl_add_u32 v16, v14, 4, v16\nv_lshlrev_b32 v9, 4, v16\nv_add_u32 v9, s59, v9\nv_xor_b32 v10, 64, v9')
    a('s_lshr_b32 s60, s45, 2\ns_and_b32 s61, s45, 3')
    a('s_lshl_b32 s62, s46, 20\ns_lshl_b32 s60, s60, 14\ns_add_u32 s62, s62, s60')
    a('s_lshl_b32 s63, s61, 18\ns_add_u32 s63, s63, s62\ns_lshl_b32 s60, s47, 13\ns_add_u32 s63, s63, s60')
    a('s_add_u32 s3, s63, 4096')
    a('s_lshl_b32 s60, s47, 19\ns_add_u32 s62, s62, s60\ns_lshl_b32 s60, s61, 12\ns_add_u32 s62, s62, s60\ns_add_u32 s62, s62, 0x800000')
    a('s_add_u32 s61, s62, 0x40000')
    a(f's_mov_b32 s4, {CSCALE}\ns_mov_b32 s5, {SEL_E}\ns_mov_b32 s6, {SEL_O}')
    T0 = 16
    vload = [(gi, j) for gi in range(2) for j in range(8)]
    def vxreg(gi, j):
        n = gi * 8 + j
        return BLK + 16 * (n // 4) + 4 * (n % 4)
    for p in range(8):
        B = BLK + 16 * p
        vm.wait(f'k{p}')
        sl, sh, zl, zh = T0, T0 + 1, T0 + 2, T0 + 3
        a(f'v_perm_b32 v{sl}, v{rKS+2*p}, v{rKS+2*p}, v{vSel}\nv_perm_b32 v{sh}, v{rKS+2*p+1}, v{rKS+2*p+1}, v{vSel}')
        a(f'v_perm_b32 v{zl}, v{rKZ+2*p}, v{rKZ+2*p}, v{vSel}\nv_perm_b32 v{zh}, v{rKZ+2*p+1}, v{rKZ+2*p+1}, v{vSel}')
        a(f'v_mul_f32 v{sl}, s4, v{sl}\nv_mul_f32 v{sh}, s4, v{sh}\nv_mul_f32 v{zl}, v{zl}, v{sl}\nv_mul_f32 v{zh}, v{zh}, v{sh}')
        for e in range(8): a(f'v_cvt_f32_i32 v{B+e}, v{B+e}')
        for e in range(4): a(f'v_fma_f32 v{B+e}, v{B+e}, v{sl}, -v{zl}')
        for e in range(4): a(f'v_fma_f32 v{B+4+e}, v{B+4+e}, v{sh}, -v{zh}')
        for e in range(4): a(f'v_cvt_pk_bf16_f32 v{B+e}, v{B+e}, v{B+4+e}')
        B1, B2 = T0 + 4, T0 + 8
        for e in range(4):
            sel = 's5' if e % 2 == 0 else 's6'
            a(f'v_perm_b32 v{B1+e}, v{B+12+e//2}, v{B+8+e//2}, {sel}')
            a(f'v_perm_b32 v{B2+e}, v{B+10+e//2}, v{B+14+e//2}, {sel}')
        for e in range(4): a(f'v_dot2_f32_bf16 v{B1+e}, v{B+e}, v{B1+e}, 0 neg_hi:[0,1,0]')
        for e in range(4): a(f'v_dot2_f32_bf16 v{B2+e}, v{B+e}, v{B2+e}, 0')
        O = T0 + 12 + 4 * (p % 2)
        a(f'v_xor_b32 v{vT}, {p*16}, v{vW0}')
        a(f'v_cvt_pk_bf16_f32 v{O}, v{B1}, v{B1+1}\nv_cvt_pk_bf16_f32 v{O+1}, v{B1+2}, v{B1+3}')
        a(f'ds_write_b64 v{vT}, {vr(O,2)}')
        a(f'v_cvt_pk_bf16_f32 v{O+2}, v{B2}, v{B2+1}\nv_cvt_pk_bf16_f32 v{O+3}, v{B2+2}, v{B2+3}')
        a(f'ds_write_b64 v{vT}, {vr(O+2,2)} offset:4096')
        if p < 4:
            for n in range(4 * p, 4 * p + 4):
                gi, j = vload[n]
                so = 's56' if j < 4 else 's57'
                vm.issue(f'buffer_load_dwordx4 {vr(vxreg(gi,j),4)}, v{vD}, s[{QV}:{QV+3}], {so} offen offset:{(j%4)*1024+gi*256}{LDA}', f'v{gi}')
    stamp(a, st, 1)
    a('s_waitcnt lgkmcnt(0)')
    KO = BLK + 64
    for s in range(8): a(f'ds_read_b128 {vr(KO+4*s,4)}, v{vRe if s%2==0 else vRo} offset:{s*1024}')
    for s in range(8):
        a(f's_waitcnt lgkmcnt({7-s})')
        vm.issue(f'buffer_store_dwordx4 {vr(KO+4*s,4)}, v{vL}, s[{WS}:{WS+3}], {"s63" if s<4 else "s3"} offen offset:{(s%4)*1024}{STK}', 'st')
    vm.wait('vs')
    SV, ZV = T0, T0 + 8
    VO = BLK + 96
    for gi in range(2):
        for j in range(8):
            src = 4 * (j // 2) + 2 * (j % 2)
            if gi == 0: a(f'v_lshlrev_b32 v{SV+j}, 16, v{rVS+src}\nv_lshlrev_b32 v{ZV+j}, 16, v{rVZ+src}')
            else: a(f'v_and_b32 v{SV+j}, 0xffff0000, v{rVS+src}\nv_and_b32 v{ZV+j}, 0xffff0000, v{rVZ+src}')
        for j in range(8): a(f'v_mul_f32 v{ZV+j}, v{ZV+j}, v{SV+j}')
        vm.wait(f'v{gi}')
        for j in range(8):
            x = vxreg(gi, j)
            for i in range(4): a(f'v_cvt_f32_i32 v{x+i}, v{x+i}')
            for i in range(4): a(f'v_fma_f32 v{x+i}, v{x+i}, v{SV+j}, -v{ZV+j}')
        for i in range(4):
            for jp in range(4):
                a(f'v_cvt_pk_bf16_f32 v{VO+16*gi+4*i+jp}, v{vxreg(gi,2*jp)+i}, v{vxreg(gi,2*jp+1)+i}')
            vm.issue(f'buffer_store_dwordx4 {vr(VO+16*gi+4*i,4)}, v{vL}, s[{WS}:{WS+3}], {"s62" if gi==0 else "s61"} offen offset:{i*1024}{STK}', 'st')
    stamp(a, st, 2)
    if st:
        a('s_waitcnt vmcnt(0)')
        stamp(a, st, 3)
        stamp_flush(a, st, 4, WS, 's44', 0, 16)
    a('Lp_done:\ns_endpgm')

class Sched:
    def __init__(self, n, cap=2):
        self.n = n; self.gap = [[] for _ in range(n)]; self.used = [0] * n; self.cap = cap; self.tail = [[] for _ in range(n)]
    def fixed(self, g, text, cost=1, tail=False):
        (self.tail if tail else self.gap)[g].append(text); self.used[g] += cost
    def place(self, items, start):
        g = start; out = []
        for text, cost, earliest in items:
            g = max(g, earliest)
            while self.used[g % self.n] + cost > self.cap: g += 1
            self.gap[g % self.n].append(text); self.used[g % self.n] += cost
            out.append(g)
        return out

def gen_attn(a, o):
    st = o.get('stamps')
    R = o.get('R', 8)
    AUX = o.get('kv_aux', '')
    K = f'{NAME}_kernel'
    a(f'.globl {K}\n.p2align 8\n.type {K},@function\n{K}:')
    a('s_cmp_ge_u32 s2, 256\ns_cbranch_scc1 La_done')
    stamp(a, st, 0)
    SQ, SC, SN, WS, OUT = 8, 12, 16, 20, 24
    post = []
    post += srd(a, SQ, 0, 8 << 20); post += srd(a, SC, 56, 1 << 20); post += srd(a, SN, 64, 1 << 20)
    post += srd(a, WS, 104, 16 << 20); post += srd(a, OUT, 88, 8 << 20)
    for s in post: a(s)
    vOff = 1
    vPw, vPr, vT = 5, 6, 7
    L = 8
    MF = 12
    NM = 16
    S = 32
    PO = 64
    O = 80
    QL = 144
    T0 = 240
    aQ, aR, aP = 0, 128, 224
    assert aR + 4 * R <= aP
    LP, LM, LL = 0, 32768, 33792
    sW, sK, sV, sVn, sKb, sCnt, sSecond, sT = 's28', 's29', 's30', 's31', 's32', 's33', 's34', 's35'
    a('v_lshrrev_b32 v7, 6, v0\nv_and_b32 v0, 63, v0')
    a('v_lshlrev_b32 v1, 4, v0')
    a(f'v_readfirstlane_b32 {sW}, v7')
    a('v_lshrrev_b32 v240, 4, v0\nv_and_b32 v241, 15, v0')
    a('v_lshlrev_b32 v242, 11, v240\nv_lshl_add_u32 v242, v241, 4, v242')
    a('s_and_b32 s36, s2, 7\ns_lshr_b32 s37, s2, 3')
    a(f's_lshl_b32 s38, s37, 2\ns_add_u32 s38, s38, {sW}\ns_lshl_b32 s38, s38, 13')
    a('s_lshl_b32 s39, s36, 20\ns_add_u32 s40, s39, s38')
    a(f's_lshl_b32 {sKb}, {sW}, 18\ns_add_u32 {sKb}, {sKb}, s39')
    a('s_waitcnt lgkmcnt(0)')
    vm = VM(a)
    for p in range(4):
        B = QL + 24 * p
        for n, (sd, so) in enumerate(((SQ, 's40'), (SC, 's38'), (SN, 's38'))):
            for hi in range(2):
                vm.issue(f'buffer_load_dwordx4 {vr(B+8*n+4*hi,4)}, v242, s[{sd}:{sd+3}], {so} offen offset:{p*512+hi*256}', f'q{p}')
    a('v_add_u32 v2, 4096, v1\nv_add_u32 v3, 8192, v1\nv_add_u32 v4, 12288, v1')
    a(f's_mov_b32 {sSecond}, 0')
    for qb in range(4): a(f'v_mov_b32 v{MF+qb}, 0xff800000')
    def kvload(n, sreg):
        return lambda slot: f'buffer_load_dwordx4 {ar(aR+4*slot,4)}, v{vOff+n//4}, s[{WS}:{WS+3}], {sreg} offen offset:{(n%4)*1024}{AUX}'
    def start_stream():
        a(f's_and_b32 {sT}, s37, 15\ns_lshl_b32 {sT}, {sT}, 14\ns_add_u32 {sK}, {sKb}, {sT}')
    start_stream()
    for n in range(R - 1): vm.issue(kvload(n, sK)(n), 'kv')
    a(f's_mov_b32 s4, {SEL_E}\ns_mov_b32 s5, {SEL_O}')
    a('v_lshrrev_b32 v243, 2, v241\nv_and_b32 v244, 3, v241\nv_and_b32 v245, 7, v241')
    a('v_lshlrev_b32 v246, 2, v240\nv_xor_b32 v246, v246, v245\nv_lshl_add_u32 v246, v244, 4, v246\nv_lshlrev_b32 v246, 4, v246')
    a(f'v_lshl_add_u32 v246, v243, 10, v246\ns_lshl_b32 {sT}, {sW}, 13\nv_add_u32 v246, {sT}, v246')
    a('v_xor_b32 v247, v241, v240\nv_lshl_add_u32 v247, v240, 4, v247\nv_lshlrev_b32 v247, 4, v247\nv_xor_b32 v248, 64, v247')
    TA = S
    for p in range(4):
        B = QL + 24 * p
        vm.wait(f'q{p}')
        ql, qh, cl_, ch, sl, sh = B, B + 4, B + 8, B + 12, B + 16, B + 20
        for k in range(4):
            t = TA + 8 * (k % 2)
            for e, sel in enumerate(('s4', 's5')):
                a(f'v_perm_b32 v{t+e}, v{qh+k}, v{ql+k}, {sel}')
                a(f'v_perm_b32 v{t+2+e}, v{sl+k}, v{cl_+k}, {sel}')
                a(f'v_perm_b32 v{t+4+e}, v{ch+k}, v{sh+k}, {sel}')
            for e in range(2): a(f'v_dot2_f32_bf16 v{t+2+e}, v{t+e}, v{t+2+e}, 0 neg_hi:[0,1,0]')
            for e in range(2): a(f'v_dot2_f32_bf16 v{t+4+e}, v{t+e}, v{t+4+e}, 0')
            if k > 0:
                tp = TA + 8 * ((k - 1) % 2)
            a('s_nop 0')
            a(f'v_cvt_pk_bf16_f32 v{ql+k}, v{t+2}, v{t+3}') if False else None
            if k > 0:
                a(f'v_cvt_pk_bf16_f32 v{ql+k-1}, v{tp+2}, v{tp+3}\nv_cvt_pk_bf16_f32 v{qh+k-1}, v{tp+4}, v{tp+5}')
        t = TA + 8
        a(f'v_xor_b32 v{vT}, {p*16}, v246\ns_nop 0')
        a(f'v_cvt_pk_bf16_f32 v{ql+3}, v{t+2}, v{t+3}\nv_cvt_pk_bf16_f32 v{qh+3}, v{t+4}, v{t+5}')
        a(f'ds_write_b128 v{vT}, {vr(ql,4)}\nds_write_b128 v{vT}, {vr(qh,4)} offset:4096')
    a('s_waitcnt lgkmcnt(0)\ns_barrier')
    for s in range(8):
        for qb in range(4):
            a(f'ds_read_b128 {ar(aQ+(qb*8+s)*4,4)}, v{247 if s%2==0 else 248} offset:{qb*8192+s*1024}')
    stamp(a, st, 1)
    a('La_restart:')
    a(f's_lshl_b32 {sT}, {sW}, 12\ns_add_u32 {sT}, {sT}, {LP}\nv_add_u32 v{vPw}, {sT}, v1\nv_add_u32 v{vPr}, {LP}, v1')
    for i in range(64): a(f'v_mov_b32 v{O+i}, 0')
    for qb in range(4): a(f'v_mov_b32 v{L+qb}, 0')

    def qk_mfma(n, first_c):
        f, qb = n // 4, n % 4
        kb, s = f // 8, f % 8
        D = vr(S + kb * 16 + qb * 4, 4)
        C = D if s else first_c(qb)
        return f'v_mfma_f32_16x16x32_bf16 {D}, {ar(aR+4*(f%R),4)}, {ar(aQ+(qb*8+s)*4,4)}, {C}'
    def pv_mfma(n, f0):
        f, qb = n // 4, n % 4
        u, i = f // 4, f % 4
        D = vr(O + i * 16 + qb * 4, 4)
        return f'v_mfma_f32_16x16x32_bf16 {D}, {ar(aP+(u%2)*16+qb*4,4)}, {ar(aR+4*((f0+f)%R),4)}, {D}'
    adv_k = [f's_add_u32 {sVn}, {sK}, 0x800000', f's_add_u32 {sK}, {sK}, 16384', f's_and_b32 {sK}, {sK}, 0x3ffff', f's_or_b32 {sK}, {sK}, {sKb}']
    a(f's_waitcnt vmcnt({R-2}) lgkmcnt(0)')
    for n in range(64):
        a(qk_mfma(n, lambda qb: '0'))
        f = n // 4
        if n % 4 == 0:
            m = f - 1 + R
            a(kvload(m % 16, sK)(m % R))
            if m == 15:
                for s in adv_k: a(s)
                a(f's_mov_b32 {sV}, {sVn}')
        if n % 4 == 3: a(f's_waitcnt vmcnt({R-2})')
    assert 16 % R == 0 or True
    F0 = 16 % R
    assert 32 % R == 0 and F0 == 0
    stamp(a, st, 2)
    a('s_nop 4')
    for qb in range(4):
        x = S + qb * 4; y = S + 16 + qb * 4
        a(f'v_max3_f32 v{T0+qb}, v{x}, v{x+1}, v{MF+qb}')
        a(f'v_max3_f32 v{T0+qb}, v{x+2}, v{x+3}, v{T0+qb}')
    for qb in range(4):
        y = S + 16 + qb * 4
        a(f'v_max3_f32 v{T0+qb}, v{y}, v{y+1}, v{T0+qb}')
        a(f'v_max3_f32 v{T0+qb}, v{y+2}, v{y+3}, v{T0+qb}')
    def xreduce(op, r):
        a('s_nop 1')
        a(f'v_permlane16_swap_b32 v{r}, v{r+1}\nv_permlane16_swap_b32 v{r+2}, v{r+3}')
        a(f'{op} v{r}, v{r}, v{r+1}\n{op} v{r+2}, v{r+2}, v{r+3}')
        a('s_nop 1')
        a(f'v_permlane32_swap_b32 v{r}, v{r+2}')
        a(f'{op} v{r}, v{r}, v{r+2}')
    xreduce('v_max_f32', T0)
    a(f's_lshl_b32 {sT}, {sW}, 2\nv_add_u32 v{vT}, {sT}, v1')
    a(f'ds_write_b32 v{vT}, v{T0} offset:{LM}')
    a(f'v_and_b32 v{vT}, 0xf0, v1')
    a('s_waitcnt lgkmcnt(0)\ns_barrier')
    for qb in range(4): a(f'ds_read_b128 {vr(NM+4*qb,4)}, v{vT} offset:{LM+qb*256}')
    for qb in range(4):
        a(f's_waitcnt lgkmcnt({3-qb})')
        x = NM + 4 * qb
        a(f'v_max3_f32 v{x}, v{x}, v{x+1}, v{x+2}\nv_max_f32 v{x}, v{x}, v{x+3}\nv_sub_f32 v{x}, 0, v{x}')
        a(f'v_mov_b32 v{x+1}, v{x}\nv_mov_b32 v{x+2}, v{x}\nv_mov_b32 v{x+3}, v{x}')
        for kb in range(2):
            for r in range(4): a(f'v_add_f32 v{S+kb*16+qb*4+r}, v{x}, v{S+kb*16+qb*4+r}')

    sc = Sched(128)
    for f in range(32):
        m = f - 1 + R
        if m < 16: ld = kvload(m, sK)
        elif m < 32: ld = kvload(m - 16, sV)
        else: ld = kvload(m - 32, sK)
        sc.fixed(4 * f, ld(m % R), 2)
        sc.fixed(4 * f + 3, f's_waitcnt vmcnt({R-2})', 1, tail=True)
    def soft(kb, qb):
        x = S + kb * 16 + qb * 4
        it = [(f'v_exp_f32 v{x+r}, v{x+r}', 2) for r in range(4)]
        it += [(f'v_add_f32 v{L+qb}, v{L+qb}, v{x}', 1), (f'v_add_f32 v{L+qb}, v{L+qb}, v{x+1}', 1),
               (f'v_cvt_pk_bf16_f32 v{PO+qb*4+kb*2}, v{x}, v{x+1}', 1),
               (f'v_add_f32 v{L+qb}, v{L+qb}, v{x+2}', 1), (f'v_add_f32 v{L+qb}, v{L+qb}, v{x+3}', 1),
               (f'v_cvt_pk_bf16_f32 v{PO+qb*4+kb*2+1}, v{x+2}, v{x+3}', 1)]
        return it
    GB = o.get('gbar', 34)
    pread = lambda u, qb: f'ds_read_b128 {ar(aP+(u%2)*16+qb*4,4)}, v{vPr} offset:{u*4096+qb*1024}'
    sc.fixed(GB, 's_waitcnt lgkmcnt(0)', 1); sc.fixed(GB, 's_barrier', 1)
    rd_gaps = {0: [39, 43, 47, 51], 1: [55, 59, 63, 67], 2: [83, 87, 89, 91], 3: [99, 103, 105, 107]}
    for u in range(4):
        for qb in range(4): sc.fixed(rd_gaps[u][qb], pread(u, qb), 1)
    sc.fixed(62, 's_waitcnt lgkmcnt(2)', 1)
    sc.fixed(79, 's_waitcnt lgkmcnt(0)', 1)
    sc.fixed(95, 's_waitcnt lgkmcnt(0)', 1)
    sc.fixed(111, 's_waitcnt lgkmcnt(0)', 1)
    gk = 4 * (16 - R) + 1
    salu_items = [(s, 1, gk) for s in adv_k] + [(f's_cmp_eq_u32 {sCnt}, 1', 1, gk), (f's_cselect_b32 {sK}, {sVn}, {sK}', 1, gk)]
    gv = 4 * (32 - R) + 1
    loop_salu = [(f's_mov_b32 {sV}, {sVn}', 1, gv), (f'v_xor_b32 v{vPr}, 16384, v{vPr}', 1, 113), (f's_sub_u32 {sCnt}, {sCnt}, 1', 1, 113)]
    items = []
    for kb in range(2):
        for qb in range(4):
            e = (28 if kb == 0 else 60) + qb + 6
            items += [(t, c, e, kb, qb) for t, c in soft(kb, qb)]
    g_exp = 0; placed = []
    exps = [x for x in items if x[1] == 2]; singles = [x for x in items if x[1] == 1]
    sc.place(salu_items, gk)
    sc.place(loop_salu, gv)
    ge = sc.place([(t, c, e) for t, c, e, kb, qb in exps], 0)
    last_exp = {}
    first2 = {}
    for (t, c, e, kb, qb), g in zip(exps, ge):
        last_exp[(kb, qb)] = g
        first2.setdefault((kb, qb), []).append(g)
    sit = []
    for idx, (t, c, e, kb, qb) in enumerate(singles):
        k = idx % 6
        dep = first2[(kb, qb)][1] if k < 3 else first2[(kb, qb)][3]
        sit.append((t, c, dep + 1))
    gs = sc.place(sit, 0)
    lastcvt = {qb: gs[(4 + qb) * 6 + 5] for qb in range(4)}
    wr = [(f'ds_write_b128 v{vPw}, {vr(PO+4*qb,4)} offset:{qb*1024}', 2, lastcvt[qb] + 1) for qb in range(4)]
    gw = sc.place(wr, 0)
    sc.place([(f'v_xor_b32 v{vPw}, 16384, v{vPw}', 1, gw[-1] + 1)], 0)
    info = dict(exp=(ge[0], ge[-1]), single=(gs[0], gs[-1]), wr=gw)
    assert gw[-1] < 128 + GB, info
    assert max(gs[:24]) < 128, info
    assert max(gs) < 128 + 32, info
    soft_texts = set(t for t, c, e, kb, qb in items)
    gap_of = {}
    for (t, c, e, kb, qb), g in zip(exps, ge): gap_of[t] = g
    pre = [(g, 0, t) for (t, c, e, kb, qb), g in zip(exps, ge) if g < 128] + [(g, 1, t) for (t, c, e), g in zip(sit, gs) if g < 128]
    pre += [(g, 2, t) for (t, c, e), g in zip(wr, gw) if g < 128]
    assert all(g >= 128 for g in gw) or True
    pre.sort(key=lambda x: (x[0], x[1]))
    prev_trans = None
    for g, k, t in pre:
        a(t)
    a('s_nop 0')
    early_wr = [g < 128 for g in gw]
    a(f's_mov_b32 {sCnt}, 15')
    stamp(a, st, 3)
    a('.p2align 6\nLa_loop:')
    body = []
    for n in range(128):
        body.append(qk_mfma(n, lambda qb: vr(NM + 4 * qb, 4)) if n < 64 else pv_mfma(n - 64, 16))
        body += sc.gap[n] + sc.tail[n]
    body += [f's_cmp_lg_u32 {sCnt}, 0', 's_cbranch_scc1 La_loop']
    for t in body: a(t)
    errs = hazcheck.check(body + body, 'loop')
    stamp(a, st, 4)
    post = [(g, 0, t) for (t, c, e, kb, qb), g in zip(exps, ge) if g >= 128] + [(g, 1, t) for (t, c, e), g in zip(sit, gs) if g >= 128]
    post += [(g, 2, t) for (t, c, e), g in zip(wr, gw) if g >= 128]
    post.sort(key=lambda x: (x[0], x[1]))
    for g, k, t in post:
        a(t)
        if k == 0: a('s_nop 0')
    a('s_waitcnt lgkmcnt(0)\ns_barrier')
    for u in range(2):
        for qb in range(4): a(pread(u, qb))
    for qb in range(4): a(f'v_mov_b32 v{T0+qb}, v{L+qb}')
    xreduce('v_add_f32', T0)
    a(f's_lshl_b32 {sT}, {sW}, 2\nv_add_u32 v{vT}, {sT}, v1')
    a(f'ds_write_b32 v{vT}, v{T0} offset:{LL}')
    a('s_waitcnt lgkmcnt(5)')
    for n in range(64):
        a(pv_mfma(n, 0))
        f = n // 4
        if n % 4 == 0:
            m = f - 1 + R
            if m < 16: a(kvload(m, sK)(m % R))
        if n % 4 == 3 and f < 15:
            a(f's_waitcnt vmcnt({max(0, min(R-2, 14-f))})')
        if n == 15: a('s_waitcnt lgkmcnt(0)\ns_barrier')
        if n in (17, 18, 19, 21): a(pread(2, (17, 18, 19, 21).index(n)))
        if n == 22: a(f'ds_read_b128 {vr(T0,4)}, v1 offset:{LL}')
        if n == 31: a('s_waitcnt lgkmcnt(0)')
        if n in (33, 34, 35, 37): a(pread(3, (33, 34, 35, 37).index(n)))
        if n == 38:
            a(f'v_add_f32 v{T0}, v{T0}, v{T0+1}\nv_add_f32 v{T0+2}, v{T0+2}, v{T0+3}')
        if n == 39: a(f'v_add_f32 v{T0}, v{T0}, v{T0+2}')
        if n == 41: a(f'v_rcp_f32 v{T0+1}, v{T0}')
        if n == 42: a(f's_lshl_b32 {sT}, {sW}, 8\nv_lshrrev_b32 v{vT}, 2, v1')
        if n == 43: a(f'v_add_u32 v{vT}, {sT}, v{vT}')
        if n == 45: a(f'ds_write_b32 v{vT}, v{T0+1} offset:{LL+1024}')
        if n == 46: a(f's_mov_b32 s36, 0x4f800000\nv_lshrrev_b32 v{vT}, 4, v1')
        if n == 47: a('s_waitcnt lgkmcnt(0)')
        if n == 49: a(f'v_cmp_nle_f32 vcc, v{T0}, s36') if False else a(f'v_cmp_nge_f32 vcc, s36, v{T0}')
        if n == 50: a(f'v_and_b32 v{vT}, 0x30, v{vT}')
        if n == 51: a(f'v_add_u32 v{vT}, {sT}, v{vT}')
        if n in (53, 54, 55, 57): qb = (53, 54, 55, 57).index(n); a(f'ds_read_b128 {vr(NM+4*qb,4)}, v{vT} offset:{LL+1024+qb*64}')
    stamp(a, st, 5)
    a(f's_cmp_lg_u32 {sSecond}, 0\ns_cbranch_scc1 La_store')
    a('s_cbranch_vccnz La_fallback')
    a('La_store:')
    a('v_lshrrev_b32 v240, 4, v0\nv_and_b32 v241, 15, v0\nv_lshlrev_b32 v240, 11, v240\nv_lshl_add_u32 v240, v241, 3, v240')
    a(f's_lshl_b32 s38, s37, 15\ns_add_u32 s38, s38, s39\ns_lshl_b32 {sT}, {sW}, 7\ns_add_u32 s38, s38, {sT}')
    a('s_waitcnt lgkmcnt(0)')
    for qb in range(4):
        for r in range(4):
            t = S + 8 * (r % 2) + 16 * (qb % 2)
            for i in range(4): a(f'v_mul_f32 v{t+i}, v{O+i*16+qb*4+r}, v{NM+4*qb+r}')
            a(f'v_cvt_pk_bf16_f32 v{t+4}, v{t}, v{t+1}\nv_cvt_pk_bf16_f32 v{t+5}, v{t+2}, v{t+3}')
            a(f'buffer_store_dwordx2 {vr(t+4,2)}, v240, s[{OUT}:{OUT+3}], s38 offen offset:{r*512}{o.get("out_aux","")}')
        if qb < 3: a('s_add_u32 s38, s38, 8192')
    if st:
        stamp(a, st, 6)
        a('s_waitcnt vmcnt(0)')
        stamp(a, st, 7)
        stamp_flush(a, st, 8, WS, sW, 4, 240)
    a('La_done:\ns_endpgm')
    a('La_fallback:')
    a(f's_mov_b32 {sSecond}, 1\ns_mov_b32 {sK}, {sKb}\ns_mov_b32 {sCnt}, 32')
    a('s_waitcnt vmcnt(0) lgkmcnt(0)')
    a('La_fb_loop:')
    for s in range(8): a(kvload(s, sK)(s))
    a('s_waitcnt vmcnt(0)')
    for s in range(8):
        for qb in range(4):
            D = vr(S + qb * 4, 4)
            a(f'v_mfma_f32_16x16x32_bf16 {D}, {ar(aR+4*s,4)}, {ar(aQ+(qb*8+s)*4,4)}, {D if s else "0"}')
    a(f's_add_u32 {sK}, {sK}, 8192\ns_sub_u32 {sCnt}, {sCnt}, 1\ns_nop 7')
    for qb in range(4):
        x = S + qb * 4
        a(f'v_max3_f32 v{MF+qb}, v{x}, v{x+1}, v{MF+qb}\nv_max3_f32 v{MF+qb}, v{x+2}, v{x+3}, v{MF+qb}')
    a(f's_cmp_lg_u32 {sCnt}, 0\ns_cbranch_scc1 La_fb_loop')
    start_stream()
    for n in range(R - 1): a(kvload(n, sK)(n))
    a('s_barrier\ns_branch La_restart')
    return errs

HEADER = open('cdna_kernels/' + NAME + '.s.ref').read().split('; Override launch')[0]

def gen(o):
    a = Asm()
    a(HEADER.rstrip('\n'))
    a('; @launch kernel=prep_kernel grid=(256,1,1) block=(256,1,1) lds=32768')
    a(f'; @launch kernel={NAME}_kernel grid=(256,1,1) block=(256,1,1) lds=35840')
    a('.amdgcn_target "amdgcn-amd-amdhsa--gfx950"\n.text')
    gen_prep(a, o)
    errs = gen_attn(a, o)
    errs += hazcheck.check(a.lines, 'all')
    a(kernel_desc('prep_kernel', 256, 96, 256))
    a(kernel_desc(f'{NAME}_kernel', 512, 96, 256))
    return a.text(), errs

if __name__ == '__main__':
    o = {}
    outp = None
    for x in sys.argv[1:]:
        if '=' in x:
            k, v = x.split('=', 1)
            try: v = int(v)
            except ValueError: v = v.replace('_', ' ')
            o[k] = v
        else: outp = x
    txt, errs = gen(o)
    for e in errs: print(e)
    open(outp or 'v1.s', 'w').write(txt)
```

```python
import sys
from asmlib import *
import hazcheck

NAME = 'standalone__kv_cache_quant_pre_rope_vs_post_rope__prompt'
CSCALE = 0x3db8aa3b
SEL_E = 0x05040100
SEL_O = 0x07060302
STAMP_OFF = 128 << 20

class VM:
    def __init__(self, a): self.a = a; self.ops = []
    def issue(self, text, tag=None):
        self.a(text); self.ops.append(tag)
    def wait(self, *tags):
        last = max(i for i, t in enumerate(self.ops) if t in tags)
        n = len(self.ops) - 1 - last
        self.a(f's_waitcnt vmcnt({min(n,63)})')

def srd(a, base, kaoff, nbytes):
    a(f's_load_dwordx2 s[{base}:{base+1}], s[0:1], {kaoff}')
    return [f's_mov_b32 s{base+2}, {nbytes}', f's_mov_b32 s{base+3}, 0x00020000']

def stamp(a, on, idx):
    if on: a(f's_memrealtime s[{64+2*idx}:{65+2*idx}]')

def stamp_flush(a, on, n, srdws, swave, slot0, vtmp):
    if not on: return
    a('s_waitcnt lgkmcnt(0)')
    a(f's_lshl_b32 s60, s2, 2\ns_add_u32 s60, s60, {swave}\ns_lshl_b32 s60, s60, 7\ns_add_u32 s60, s60, {STAMP_OFF + slot0*8}')
    a(f's_mov_b32 s{srdws+2}, 0x10000000')
    a(f'v_mov_b32 v{vtmp}, 0')
    for i in range(n):
        a(f'v_mov_b32 v{vtmp+2}, s{64+2*i}\nv_mov_b32 v{vtmp+3}, s{65+2*i}')
        a(f'buffer_store_dwordx2 v[{vtmp+2}:{vtmp+3}], v{vtmp}, s[{srdws}:{srdws+3}], s60 offen offset:{8*i}')
        a('s_waitcnt vmcnt(0)')

def gen_prep(a, o):
    st = o.get('stamps')
    STK = o.get('prep_store', '')
    LDA = o.get('prep_load', '')
    a('.globl prep_kernel\n.p2align 8\n.type prep_kernel,@function\nprep_kernel:')
    a('s_cmp_ge_u32 s2, 256\ns_cbranch_scc1 Lp_done')
    stamp(a, st, 0)
    QK, KS, KZ, QV, VS, VZ, KC, KN, WS = 8, 12, 16, 20, 24, 28, 32, 36, 40
    post = []
    post += srd(a, QK, 8, 16 << 20); post += srd(a, KS, 16, 128 << 10); post += srd(a, KZ, 24, 128 << 10)
    post += srd(a, QV, 32, 16 << 20); post += srd(a, VS, 40, 128 << 10); post += srd(a, VZ, 48, 128 << 10)
    post += srd(a, KC, 72, 1 << 20); post += srd(a, KN, 80, 1 << 20); post += srd(a, WS, 104, 16 << 20)
    for s in post: a(s)
    vA, vB, vC, vD, vE, vL, vSel, vW0, vRe, vRo, vT = 1, 2, 3, 4, 5, 6, 7, 8, 9, 10, 11
    a('v_lshrrev_b32 v11, 6, v0\nv_and_b32 v0, 63, v0')
    a('v_lshlrev_b32 v6, 4, v0')
    a('v_readfirstlane_b32 s44, v11')
    a('v_lshrrev_b32 v12, 5, v0\nv_and_b32 v13, 31, v0')
    a('v_lshlrev_b32 v1, 13, v12\nv_lshl_add_u32 v1, v13, 4, v1')
    a('v_lshlrev_b32 v2, 12, v12\nv_lshl_add_u32 v2, v13, 3, v2')
    a('v_lshlrev_b32 v3, 6, v12')
    a('v_lshrrev_b32 v14, 4, v0\nv_and_b32 v15, 15, v0')
    a('v_lshlrev_b32 v4, 12, v14\nv_lshl_add_u32 v4, v15, 4, v4')
    a('v_lshlrev_b32 v5, 5, v14')
    a('s_and_b32 s45, s2, 7\ns_lshr_b32 s46, s2, 3\ns_and_b32 s47, s46, 7\ns_lshl_b32 s45, s45, 3\ns_add_u32 s45, s45, s47')
    a('s_lshr_b32 s46, s46, 3\ns_lshl_b32 s46, s46, 1\ns_lshr_b32 s47, s44, 1\ns_add_u32 s46, s46, s47')
    if o.get('hx'):
        a('s_and_b32 s46, s2, 7\ns_lshr_b32 s45, s2, 3\ns_lshl_b32 s45, s45, 1\ns_lshr_b32 s47, s44, 1\ns_add_u32 s45, s45, s47')
    a('s_and_b32 s47, s44, 1')
    a('s_lshl_b32 s48, s46, 11\ns_lshl_b32 s49, s45, 5\ns_add_u32 s48, s48, s49')
    a('s_lshl_b32 s50, s47, 4')
    a('s_add_u32 s51, s48, s50')
    a('s_lshl_b32 s52, s51, 10\ns_add_u32 s53, s52, 4096')
    a('s_add_u32 s54, s49, s50\ns_lshl_b32 s54, s54, 9')
    a('s_lshl_b32 s55, s51, 3')
    a('s_lshl_b32 s56, s48, 10\ns_lshl_b32 s57, s47, 9\ns_add_u32 s56, s56, s57\ns_add_u32 s57, s56, 16384')
    a('s_lshl_b32 s58, s48, 3\ns_lshl_b32 s59, s47, 2\ns_add_u32 s58, s58, s59')
    a('s_waitcnt lgkmcnt(0)')
    fine = o.get('fine')
    if fine: stamp(a, st, 4)
    vm = VM(a)
    BLK = 128
    rKS, rKZ, rVS, rVZ = 64, 80, 96, 112
    for i in range(4): vm.issue(f'buffer_load_dwordx4 {vr(rKS+4*i,4)}, v{vC}, s[{KS}:{KS+3}], s55 offen offset:{16*i}', 'ks')
    for i in range(4): vm.issue(f'buffer_load_dwordx4 {vr(rKZ+4*i,4)}, v{vC}, s[{KZ}:{KZ+3}], s55 offen offset:{16*i}', 'ks')
    for p in range(8):
        B = BLK + 16 * p
        so = 's52' if p < 4 else 's53'
        vm.issue(f'buffer_load_dwordx4 {vr(B,4)}, v{vA}, s[{QK}:{QK+3}], {so} offen offset:{(p%4)*1024}{LDA}', f'k{p}')
        vm.issue(f'buffer_load_dwordx4 {vr(B+4,4)}, v{vA}, s[{QK}:{QK+3}], {so} offen offset:{(p%4)*1024+512}{LDA}', f'k{p}')
        vm.issue(f'buffer_load_dwordx2 {vr(B+8,2)}, v{vB}, s[{KC}:{KC+3}], s54 offen offset:{p*512}{o.get("kc_aux","")}', f'k{p}')
        vm.issue(f'buffer_load_dwordx2 {vr(B+10,2)}, v{vB}, s[{KC}:{KC+3}], s54 offen offset:{p*512+256}{o.get("kc_aux","")}', f'k{p}')
        vm.issue(f'buffer_load_dwordx2 {vr(B+12,2)}, v{vB}, s[{KN}:{KN+3}], s54 offen offset:{p*512}{o.get("kc_aux","")}', f'k{p}')
        vm.issue(f'buffer_load_dwordx2 {vr(B+14,2)}, v{vB}, s[{KN}:{KN+3}], s54 offen offset:{p*512+256}{o.get("kc_aux","")}', f'k{p}')
    for i in range(4): vm.issue(f'buffer_load_dwordx4 {vr(rVS+4*i,4)}, v{vE}, s[{VS}:{VS+3}], s58 offen offset:{(i>>1)*128+(i&1)*16}', 'vs')
    for i in range(4): vm.issue(f'buffer_load_dwordx4 {vr(rVZ+4*i,4)}, v{vE}, s[{VZ}:{VZ+3}], s58 offen offset:{(i>>1)*128+(i&1)*16}', 'vs')
    a('v_lshrrev_b32 v16, 4, v13')
    a('v_mul_u32_u24 v16, 0x0202, v16\nv_lshlrev_b32 v16, 16, v16\nv_add_u32 v7, 0x01000c0c, v16')
    a('v_lshrrev_b32 v16, 3, v13\nv_bfe_u32 v17, v13, 1, 2\nv_and_b32 v18, 1, v13')
    a('v_lshlrev_b32 v8, 10, v16\nv_lshl_add_u32 v8, v17, 8, v8\nv_lshl_add_u32 v8, v12, 7, v8\nv_lshl_add_u32 v8, v18, 3, v8')
    a('v_and_b32 v16, 1, v16\nv_lshl_add_u32 v16, v16, 2, v17\nv_lshl_add_u32 v8, v16, 4, v8')
    a('s_lshl_b32 s59, s44, 13\nv_add_u32 v8, s59, v8')
    a('v_xor_b32 v16, v15, v14\nv_lshl_add_u32 v16, v14, 4, v16\nv_lshlrev_b32 v9, 4, v16\nv_add_u32 v9, s59, v9\nv_xor_b32 v10, 64, v9')
    a('s_lshr_b32 s60, s45, 2\ns_and_b32 s61, s45, 3')
    a('s_lshl_b32 s62, s46, 20\ns_lshl_b32 s60, s60, 14\ns_add_u32 s62, s62, s60')
    a('s_lshl_b32 s63, s61, 18\ns_add_u32 s63, s63, s62\ns_lshl_b32 s60, s47, 13\ns_add_u32 s63, s63, s60')
    a('s_add_u32 s3, s63, 4096')
    a('s_lshl_b32 s60, s47, 19\ns_add_u32 s62, s62, s60\ns_lshl_b32 s60, s61, 12\ns_add_u32 s62, s62, s60\ns_add_u32 s62, s62, 0x800000')
    a('s_add_u32 s61, s62, 0x40000')
    a(f's_mov_b32 s4, {CSCALE}\ns_mov_b32 s5, {SEL_E}\ns_mov_b32 s6, {SEL_O}')
    T0 = 16
    vload = [(gi, j) for gi in range(2) for j in range(8)]
    def vxreg(gi, j):
        n = gi * 8 + j
        return BLK + 16 * (n // 4) + 4 * (n % 4)
    for p in range(8):
        B = BLK + 16 * p
        if fine and p == 0:
            stamp(a, st, 5); vm.wait('ks'); stamp(a, st, 6)
        vm.wait(f'k{p}')
        if fine and p in (0, 1, 3, 5, 7): stamp(a, st, 7 + (0, 1, 3, 5, 7).index(p))
        sl, sh, zl, zh = T0, T0 + 1, T0 + 2, T0 + 3
        a(f'v_perm_b32 v{sl}, v{rKS+2*p}, v{rKS+2*p}, v{vSel}\nv_perm_b32 v{sh}, v{rKS+2*p+1}, v{rKS+2*p+1}, v{vSel}')
        a(f'v_perm_b32 v{zl}, v{rKZ+2*p}, v{rKZ+2*p}, v{vSel}\nv_perm_b32 v{zh}, v{rKZ+2*p+1}, v{rKZ+2*p+1}, v{vSel}')
        a(f'v_mul_f32 v{sl}, s4, v{sl}\nv_mul_f32 v{sh}, s4, v{sh}\nv_mul_f32 v{zl}, v{zl}, v{sl}\nv_mul_f32 v{zh}, v{zh}, v{sh}')
        for e in range(8): a(f'v_cvt_f32_i32 v{B+e}, v{B+e}')
        for e in range(4): a(f'v_fma_f32 v{B+e}, v{B+e}, v{sl}, -v{zl}')
        for e in range(4): a(f'v_fma_f32 v{B+4+e}, v{B+4+e}, v{sh}, -v{zh}')
        for e in range(4): a(f'v_cvt_pk_bf16_f32 v{B+e}, v{B+e}, v{B+4+e}')
        B1, B2 = T0 + 4, T0 + 8
        for e in range(4):
            sel = 's5' if e % 2 == 0 else 's6'
            a(f'v_perm_b32 v{B1+e}, v{B+12+e//2}, v{B+8+e//2}, {sel}')
            a(f'v_perm_b32 v{B2+e}, v{B+10+e//2}, v{B+14+e//2}, {sel}')
        for e in range(4): a(f'v_dot2_f32_bf16 v{B1+e}, v{B+e}, v{B1+e}, 0 neg_hi:[0,1,0]')
        for e in range(4): a(f'v_dot2_f32_bf16 v{B2+e}, v{B+e}, v{B2+e}, 0')
        O = T0 + 12 + 4 * (p % 2)
        a(f'v_xor_b32 v{vT}, {p*16}, v{vW0}')
        a(f'v_cvt_pk_bf16_f32 v{O}, v{B1}, v{B1+1}\nv_cvt_pk_bf16_f32 v{O+1}, v{B1+2}, v{B1+3}')
        a(f'ds_write_b64 v{vT}, {vr(O,2)}')
        a(f'v_cvt_pk_bf16_f32 v{O+2}, v{B2}, v{B2+1}\nv_cvt_pk_bf16_f32 v{O+3}, v{B2+2}, v{B2+3}')
        a(f'ds_write_b64 v{vT}, {vr(O+2,2)} offset:4096')
        if p < 4:
            for n in range(4 * p, 4 * p + 4):
                gi, j = vload[n]
                so = 's56' if j < 4 else 's57'
                vm.issue(f'buffer_load_dwordx4 {vr(vxreg(gi,j),4)}, v{vD}, s[{QV}:{QV+3}], {so} offen offset:{(j%4)*1024+gi*256}{LDA}', f'v{gi}')
    stamp(a, st, 1)
    a('s_waitcnt lgkmcnt(0)')
    KO = BLK + 64
    for s in range(8): a(f'ds_read_b128 {vr(KO+4*s,4)}, v{vRe if s%2==0 else vRo} offset:{s*1024}')
    for s in range(8):
        a(f's_waitcnt lgkmcnt({7-s})')
        vm.issue(f'buffer_store_dwordx4 {vr(KO+4*s,4)}, v{vL}, s[{WS}:{WS+3}], {"s63" if s<4 else "s3"} offen offset:{(s%4)*1024}{STK}', 'st')
    vm.wait('vs')
    SV, ZV = T0, T0 + 8
    VO = BLK + 96
    for gi in range(2):
        for j in range(8):
            src = 4 * (j // 2) + 2 * (j % 2)
            if gi == 0: a(f'v_lshlrev_b32 v{SV+j}, 16, v{rVS+src}\nv_lshlrev_b32 v{ZV+j}, 16, v{rVZ+src}')
            else: a(f'v_and_b32 v{SV+j}, 0xffff0000, v{rVS+src}\nv_and_b32 v{ZV+j}, 0xffff0000, v{rVZ+src}')
        for j in range(8): a(f'v_mul_f32 v{ZV+j}, v{ZV+j}, v{SV+j}')
        vm.wait(f'v{gi}')
        for j in range(8):
            x = vxreg(gi, j)
            for i in range(4): a(f'v_cvt_f32_i32 v{x+i}, v{x+i}')
            for i in range(4): a(f'v_fma_f32 v{x+i}, v{x+i}, v{SV+j}, -v{ZV+j}')
        for i in range(4):
            for jp in range(4):
                a(f'v_cvt_pk_bf16_f32 v{VO+16*gi+4*i+jp}, v{vxreg(gi,2*jp)+i}, v{vxreg(gi,2*jp+1)+i}')
            vm.issue(f'buffer_store_dwordx4 {vr(VO+16*gi+4*i,4)}, v{vL}, s[{WS}:{WS+3}], {"s62" if gi==0 else "s61"} offen offset:{i*1024}{STK}', 'st')
    stamp(a, st, 2)
    if st:
        a('s_waitcnt vmcnt(0)')
        stamp(a, st, 3)
        stamp_flush(a, st, 12 if fine else 4, WS, 's44', 0, 16)
    a('Lp_done:\ns_endpgm')

class Sched:
    def __init__(self, n, cap=2):
        self.n = n; self.gap = [[] for _ in range(n)]; self.used = [0] * n; self.cap = cap; self.tail = [[] for _ in range(n)]
    def fixed(self, g, text, cost=1, tail=False):
        (self.tail if tail else self.gap)[g].append(text); self.used[g] += cost
    def place(self, items, start):
        g = start; out = []
        for text, cost, earliest in items:
            g = max(g, earliest)
            while self.used[g % self.n] + cost > self.cap: g += 1
            self.gap[g % self.n].append(text); self.used[g % self.n] += cost
            out.append(g)
        return out

def gen_attn(a, o):
    st = o.get('stamps')
    R = o.get('R', 8)
    AUX = o.get('kv_aux', '')
    K = f'{NAME}_kernel'
    a(f'.globl {K}\n.p2align 8\n.type {K},@function\n{K}:')
    a('s_cmp_ge_u32 s2, 256\ns_cbranch_scc1 La_done')
    stamp(a, st, 0)
    SQ, SC, SN, WS, OUT = 8, 12, 16, 20, 24
    post = []
    post += srd(a, SQ, 0, 8 << 20); post += srd(a, SC, 56, 1 << 20); post += srd(a, SN, 64, 1 << 20)
    post += srd(a, WS, 104, 16 << 20); post += srd(a, OUT, 88, 8 << 20)
    for s in post: a(s)
    vOff = 1
    vPw, vPr, vT = 5, 6, 7
    L = 8
    MF = 12
    NM = 16
    S = 32
    PO = 64
    O = 80
    QL = 144
    T0 = 240
    aQ, aR, aP = 0, 128, 224
    assert aR + 4 * R <= aP
    LP, LM, LL = 0, 32768, 33792
    sW, sK, sV, sVn, sKb, sCnt, sSecond, sT = 's28', 's29', 's30', 's31', 's32', 's33', 's34', 's35'
    a('v_lshrrev_b32 v7, 6, v0\nv_and_b32 v0, 63, v0')
    a('v_lshlrev_b32 v1, 4, v0')
    a(f'v_readfirstlane_b32 {sW}, v7')
    a('v_lshrrev_b32 v240, 4, v0\nv_and_b32 v241, 15, v0')
    a('v_lshlrev_b32 v242, 11, v240\nv_lshl_add_u32 v242, v241, 4, v242')
    a('s_and_b32 s36, s2, 7\ns_lshr_b32 s37, s2, 3')
    a(f's_lshl_b32 s38, s37, 2\ns_add_u32 s38, s38, {sW}\ns_lshl_b32 s38, s38, 13')
    a('s_lshl_b32 s39, s36, 20\ns_add_u32 s40, s39, s38')
    a(f's_lshl_b32 {sKb}, {sW}, 18\ns_add_u32 {sKb}, {sKb}, s39')
    a('s_waitcnt lgkmcnt(0)')
    vm = VM(a)
    for p in range(4):
        B = QL + 24 * p
        for n, (sd, so) in enumerate(((SQ, 's40'), (SC, 's38'), (SN, 's38'))):
            for hi in range(2):
                vm.issue(f'buffer_load_dwordx4 {vr(B+8*n+4*hi,4)}, v242, s[{sd}:{sd+3}], {so} offen offset:{p*512+hi*256}{o.get("q_aux","") if n==0 else o.get("qc_aux","")}', f'q{p}')
    a('v_add_u32 v2, 4096, v1\nv_add_u32 v3, 8192, v1\nv_add_u32 v4, 12288, v1')
    a(f's_mov_b32 {sSecond}, 0')
    for qb in range(4): a(f'v_mov_b32 v{MF+qb}, 0xff800000')
    def kvload(n, sreg):
        return lambda slot: f'buffer_load_dwordx4 {ar(aR+4*slot,4)}, v{vOff+n//4}, s[{WS}:{WS+3}], {sreg} offen offset:{(n%4)*1024}{AUX}'
    def start_stream():
        a(f's_and_b32 {sT}, s37, 15\ns_lshl_b32 {sT}, {sT}, 14\ns_add_u32 {sK}, {sKb}, {sT}')
    start_stream()
    for n in range(R - 1): vm.issue(kvload(n, sK)(n), 'kv')
    a(f's_mov_b32 s4, {SEL_E}\ns_mov_b32 s5, {SEL_O}')
    a('v_lshrrev_b32 v243, 2, v241\nv_and_b32 v244, 3, v241\nv_and_b32 v245, 7, v241')
    a('v_lshlrev_b32 v246, 2, v240\nv_xor_b32 v246, v246, v245\nv_lshl_add_u32 v246, v244, 4, v246\nv_lshlrev_b32 v246, 4, v246')
    a(f'v_lshl_add_u32 v246, v243, 10, v246\ns_lshl_b32 {sT}, {sW}, 13\nv_add_u32 v246, {sT}, v246')
    a('v_xor_b32 v247, v241, v240\nv_lshl_add_u32 v247, v240, 4, v247\nv_lshlrev_b32 v247, 4, v247\nv_xor_b32 v248, 64, v247')
    TA = S
    for p in range(4):
        B = QL + 24 * p
        vm.wait(f'q{p}')
        ql, qh, cl_, ch, sl, sh = B, B + 4, B + 8, B + 12, B + 16, B + 20
        for k in range(4):
            t = TA + 8 * (k % 2)
            for e, sel in enumerate(('s4', 's5')):
                a(f'v_perm_b32 v{t+e}, v{qh+k}, v{ql+k}, {sel}')
                a(f'v_perm_b32 v{t+2+e}, v{sl+k}, v{cl_+k}, {sel}')
                a(f'v_perm_b32 v{t+4+e}, v{ch+k}, v{sh+k}, {sel}')
            for e in range(2): a(f'v_dot2_f32_bf16 v{t+2+e}, v{t+e}, v{t+2+e}, 0 neg_hi:[0,1,0]')
            for e in range(2): a(f'v_dot2_f32_bf16 v{t+4+e}, v{t+e}, v{t+4+e}, 0')
            if k > 0:
                tp = TA + 8 * ((k - 1) % 2)
            a('s_nop 0')
            a(f'v_cvt_pk_bf16_f32 v{ql+k}, v{t+2}, v{t+3}') if False else None
            if k > 0:
                a(f'v_cvt_pk_bf16_f32 v{ql+k-1}, v{tp+2}, v{tp+3}\nv_cvt_pk_bf16_f32 v{qh+k-1}, v{tp+4}, v{tp+5}')
        t = TA + 8
        a(f'v_xor_b32 v{vT}, {p*16}, v246\ns_nop 0')
        a(f'v_cvt_pk_bf16_f32 v{ql+3}, v{t+2}, v{t+3}\nv_cvt_pk_bf16_f32 v{qh+3}, v{t+4}, v{t+5}')
        a(f'ds_write_b128 v{vT}, {vr(ql,4)}\nds_write_b128 v{vT}, {vr(qh,4)} offset:4096')
    a('s_waitcnt lgkmcnt(0)\ns_barrier')
    for s in range(8):
        for qb in range(4):
            a(f'ds_read_b128 {ar(aQ+(qb*8+s)*4,4)}, v{247 if s%2==0 else 248} offset:{qb*8192+s*1024}')
    stamp(a, st, 1)
    a('La_restart:')
    a(f's_lshl_b32 {sT}, {sW}, 12\ns_add_u32 {sT}, {sT}, {LP}\nv_add_u32 v{vPw}, {sT}, v1\nv_add_u32 v{vPr}, {LP}, v1')
    for i in range(64): a(f'v_mov_b32 v{O+i}, 0')
    for qb in range(4): a(f'v_mov_b32 v{L+qb}, 0')

    def qk_mfma(n, first_c):
        f, qb = n // 4, n % 4
        kb, s = f // 8, f % 8
        D = vr(S + kb * 16 + qb * 4, 4)
        C = D if s else first_c(qb)
        return f'v_mfma_f32_16x16x32_bf16 {D}, {ar(aR+4*(f%R),4)}, {ar(aQ+(qb*8+s)*4,4)}, {C}'
    def pv_mfma(n, f0):
        f, qb = n // 4, n % 4
        u, i = f // 4, f % 4
        D = vr(O + i * 16 + qb * 4, 4)
        return f'v_mfma_f32_16x16x32_bf16 {D}, {ar(aP+(u%2)*16+qb*4,4)}, {ar(aR+4*((f0+f)%R),4)}, {D}'
    adv_k = [f's_add_u32 {sVn}, {sK}, 0x800000', f's_add_u32 {sK}, {sK}, 16384', f's_and_b32 {sK}, {sK}, 0x3ffff', f's_or_b32 {sK}, {sK}, {sKb}']
    a(f's_waitcnt vmcnt({R-2}) lgkmcnt(0)')
    for n in range(64):
        a(qk_mfma(n, lambda qb: '0'))
        f = n // 4
        if n % 4 == 0:
            m = f - 1 + R
            a(kvload(m % 16, sK)(m % R))
            if m == 15:
                for s in adv_k: a(s)
                a(f's_mov_b32 {sV}, {sVn}')
        if n % 4 == 3: a(f's_waitcnt vmcnt({R-2})')
    assert 16 % R == 0 or True
    F0 = 16 % R
    assert 32 % R == 0 and F0 == 0
    stamp(a, st, 2)
    a('s_nop 4')
    for qb in range(4):
        x = S + qb * 4; y = S + 16 + qb * 4
        a(f'v_max3_f32 v{T0+qb}, v{x}, v{x+1}, v{MF+qb}')
        a(f'v_max3_f32 v{T0+qb}, v{x+2}, v{x+3}, v{T0+qb}')
    for qb in range(4):
        y = S + 16 + qb * 4
        a(f'v_max3_f32 v{T0+qb}, v{y}, v{y+1}, v{T0+qb}')
        a(f'v_max3_f32 v{T0+qb}, v{y+2}, v{y+3}, v{T0+qb}')
    def xreduce(op, r):
        a('s_nop 1')
        a(f'v_permlane16_swap_b32 v{r}, v{r+1}\nv_permlane16_swap_b32 v{r+2}, v{r+3}')
        a(f'{op} v{r}, v{r}, v{r+1}\n{op} v{r+2}, v{r+2}, v{r+3}')
        a('s_nop 1')
        a(f'v_permlane32_swap_b32 v{r}, v{r+2}')
        a(f'{op} v{r}, v{r}, v{r+2}')
    xreduce('v_max_f32', T0)
    a(f's_lshl_b32 {sT}, {sW}, 2\nv_add_u32 v{vT}, {sT}, v1')
    a(f'ds_write_b32 v{vT}, v{T0} offset:{LM}')
    a(f'v_and_b32 v{vT}, 0xf0, v1')
    a('s_waitcnt lgkmcnt(0)\ns_barrier')
    for qb in range(4): a(f'ds_read_b128 {vr(NM+4*qb,4)}, v{vT} offset:{LM+qb*256}')
    for qb in range(4):
        a(f's_waitcnt lgkmcnt({3-qb})')
        x = NM + 4 * qb
        a(f'v_max3_f32 v{x}, v{x}, v{x+1}, v{x+2}\nv_max_f32 v{x}, v{x}, v{x+3}\nv_sub_f32 v{x}, 0, v{x}')
        a(f'v_mov_b32 v{x+1}, v{x}\nv_mov_b32 v{x+2}, v{x}\nv_mov_b32 v{x+3}, v{x}')
        for kb in range(2):
            for r in range(4): a(f'v_add_f32 v{S+kb*16+qb*4+r}, v{x}, v{S+kb*16+qb*4+r}')

    sc = Sched(128)
    for f in range(32):
        m = f - 1 + R
        if m < 16: ld = kvload(m, sK)
        elif m < 32: ld = kvload(m - 16, sV)
        else: ld = kvload(m - 32, sK)
        sc.fixed(4 * f, ld(m % R), 2)
        sc.fixed(4 * f + 3, f's_waitcnt vmcnt({R-2})', 1, tail=True)
    def soft(kb, qb):
        x = S + kb * 16 + qb * 4
        it = [(f'v_exp_f32 v{x+r}, v{x+r}', 2) for r in range(4)]
        it += [(f'v_add_f32 v{L+qb}, v{L+qb}, v{x}', 1), (f'v_add_f32 v{L+qb}, v{L+qb}, v{x+1}', 1),
               (f'v_cvt_pk_bf16_f32 v{PO+qb*4+kb*2}, v{x}, v{x+1}', 1),
               (f'v_add_f32 v{L+qb}, v{L+qb}, v{x+2}', 1), (f'v_add_f32 v{L+qb}, v{L+qb}, v{x+3}', 1),
               (f'v_cvt_pk_bf16_f32 v{PO+qb*4+kb*2+1}, v{x+2}, v{x+3}', 1)]
        return it
    GB = o.get('gbar', 34)
    pread = lambda u, qb: f'ds_read_b128 {ar(aP+(u%2)*16+qb*4,4)}, v{vPr} offset:{u*4096+qb*1024}'
    sc.fixed(GB, 's_waitcnt lgkmcnt(0)', 1); sc.fixed(GB, 's_barrier', 1)
    rd_gaps = {0: [39, 43, 47, 51], 1: [55, 59, 63, 67], 2: [83, 87, 89, 91], 3: [99, 103, 105, 107]}
    for u in range(4):
        for qb in range(4): sc.fixed(rd_gaps[u][qb], pread(u, qb), 1)
    sc.fixed(62, 's_waitcnt lgkmcnt(2)', 1)
    sc.fixed(79, 's_waitcnt lgkmcnt(0)', 1)
    sc.fixed(95, 's_waitcnt lgkmcnt(0)', 1)
    sc.fixed(111, 's_waitcnt lgkmcnt(0)', 1)
    gk = 4 * (16 - R) + 1
    salu_items = [(s, 1, gk) for s in adv_k] + [(f's_cmp_eq_u32 {sCnt}, 1', 1, gk), (f's_cselect_b32 {sK}, {sVn}, {sK}', 1, gk)]
    gv = 4 * (32 - R) + 1
    loop_salu = [(f's_mov_b32 {sV}, {sVn}', 1, gv), (f'v_xor_b32 v{vPr}, 16384, v{vPr}', 1, 113), (f's_sub_u32 {sCnt}, {sCnt}, 1', 1, 113)]
    items = []
    for kb in range(2):
        for qb in range(4):
            e = (28 if kb == 0 else 60) + qb + 6
            items += [(t, c, e, kb, qb) for t, c in soft(kb, qb)]
    g_exp = 0; placed = []
    exps = [x for x in items if x[1] == 2]; singles = [x for x in items if x[1] == 1]
    sc.place(salu_items, gk)
    sc.place(loop_salu, gv)
    ge = sc.place([(t, c, e) for t, c, e, kb, qb in exps], 0)
    last_exp = {}
    first2 = {}
    for (t, c, e, kb, qb), g in zip(exps, ge):
        last_exp[(kb, qb)] = g
        first2.setdefault((kb, qb), []).append(g)
    sit = []
    for idx, (t, c, e, kb, qb) in enumerate(singles):
        k = idx % 6
        dep = first2[(kb, qb)][1] if k < 3 else first2[(kb, qb)][3]
        sit.append((t, c, dep + 1))
    gs = sc.place(sit, 0)
    lastcvt = {qb: gs[(4 + qb) * 6 + 5] for qb in range(4)}
    wr = [(f'ds_write_b128 v{vPw}, {vr(PO+4*qb,4)} offset:{qb*1024}', 2, lastcvt[qb] + 1) for qb in range(4)]
    gw = sc.place(wr, 0)
    sc.place([(f'v_xor_b32 v{vPw}, 16384, v{vPw}', 1, gw[-1] + 1)], 0)
    info = dict(exp=(ge[0], ge[-1]), single=(gs[0], gs[-1]), wr=gw)
    assert gw[-1] < 128 + GB, info
    assert max(gs[:24]) < 128, info
    assert max(gs) < 128 + 32, info
    soft_texts = set(t for t, c, e, kb, qb in items)
    gap_of = {}
    for (t, c, e, kb, qb), g in zip(exps, ge): gap_of[t] = g
    pre = [(g, 0, t) for (t, c, e, kb, qb), g in zip(exps, ge) if g < 128] + [(g, 1, t) for (t, c, e), g in zip(sit, gs) if g < 128]
    pre += [(g, 2, t) for (t, c, e), g in zip(wr, gw) if g < 128]
    assert all(g >= 128 for g in gw) or True
    pre.sort(key=lambda x: (x[0], x[1]))
    prev_trans = None
    for g, k, t in pre:
        a(t)
    a('s_nop 0')
    early_wr = [g < 128 for g in gw]
    a(f's_mov_b32 {sCnt}, 15')
    stamp(a, st, 3)
    a('.p2align 6\nLa_loop:')
    body = []
    for n in range(128):
        body.append(qk_mfma(n, lambda qb: vr(NM + 4 * qb, 4)) if n < 64 else pv_mfma(n - 64, 16))
        body += sc.gap[n] + sc.tail[n]
    body += [f's_cmp_lg_u32 {sCnt}, 0', 's_cbranch_scc1 La_loop']
    for t in body: a(t)
    errs = hazcheck.check(body + body, 'loop')
    stamp(a, st, 4)
    post = [(g, 0, t) for (t, c, e, kb, qb), g in zip(exps, ge) if g >= 128] + [(g, 1, t) for (t, c, e), g in zip(sit, gs) if g >= 128]
    post += [(g, 2, t) for (t, c, e), g in zip(wr, gw) if g >= 128]
    post.sort(key=lambda x: (x[0], x[1]))
    for g, k, t in post:
        a(t)
        if k == 0: a('s_nop 0')
    a('s_waitcnt lgkmcnt(0)\ns_barrier')
    for u in range(2):
        for qb in range(4): a(pread(u, qb))
    for qb in range(4): a(f'v_mov_b32 v{T0+qb}, v{L+qb}')
    xreduce('v_add_f32', T0)
    a(f's_lshl_b32 {sT}, {sW}, 2\nv_add_u32 v{vT}, {sT}, v1')
    a(f'ds_write_b32 v{vT}, v{T0} offset:{LL}')
    a('s_waitcnt lgkmcnt(5)')
    for n in range(64):
        a(pv_mfma(n, 0))
        f = n // 4
        if n % 4 == 0:
            m = f - 1 + R
            if m < 16: a(kvload(m, sK)(m % R))
        if n % 4 == 3 and f < 15:
            a(f's_waitcnt vmcnt({max(0, min(R-2, 14-f))})')
        if n == 15: a('s_waitcnt lgkmcnt(0)\ns_barrier')
        if n in (17, 18, 19, 21): a(pread(2, (17, 18, 19, 21).index(n)))
        if n == 22: a(f'ds_read_b128 {vr(T0,4)}, v1 offset:{LL}')
        if n == 31: a('s_waitcnt lgkmcnt(0)')
        if n in (33, 34, 35, 37): a(pread(3, (33, 34, 35, 37).index(n)))
        if n == 38:
            a(f'v_add_f32 v{T0}, v{T0}, v{T0+1}\nv_add_f32 v{T0+2}, v{T0+2}, v{T0+3}')
        if n == 39: a(f'v_add_f32 v{T0}, v{T0}, v{T0+2}')
        if n == 41: a(f'v_rcp_f32 v{T0+1}, v{T0}')
        if n == 42: a(f's_lshl_b32 {sT}, {sW}, 8\nv_lshrrev_b32 v{vT}, 2, v1')
        if n == 43: a(f'v_add_u32 v{vT}, {sT}, v{vT}')
        if n == 45: a(f'ds_write_b32 v{vT}, v{T0+1} offset:{LL+1024}')
        if n == 46: a(f's_mov_b32 s36, 0x4f800000\nv_lshrrev_b32 v{vT}, 4, v1')
        if n == 47: a('s_waitcnt lgkmcnt(0)')
        if n == 49: a(f'v_cmp_nle_f32 vcc, v{T0}, s36') if False else a(f'v_cmp_nge_f32 vcc, s36, v{T0}')
        if n == 50: a(f'v_and_b32 v{vT}, 0x30, v{vT}')
        if n == 51: a(f'v_add_u32 v{vT}, {sT}, v{vT}')
        if n in (53, 54, 55, 57): qb = (53, 54, 55, 57).index(n); a(f'ds_read_b128 {vr(NM+4*qb,4)}, v{vT} offset:{LL+1024+qb*64}')
    stamp(a, st, 5)
    a(f's_cmp_lg_u32 {sSecond}, 0\ns_cbranch_scc1 La_store')
    a('s_cbranch_vccnz La_fallback')
    a('La_store:')
    a('v_lshrrev_b32 v240, 4, v0\nv_and_b32 v241, 15, v0\nv_lshlrev_b32 v240, 11, v240\nv_lshl_add_u32 v240, v241, 3, v240')
    a(f's_lshl_b32 s38, s37, 15\ns_add_u32 s38, s38, s39\ns_lshl_b32 {sT}, {sW}, 7\ns_add_u32 s38, s38, {sT}')
    a('s_waitcnt lgkmcnt(0)')
    for qb in range(4):
        for r in range(4):
            t = S + 8 * (r % 2) + 16 * (qb % 2)
            for i in range(4): a(f'v_mul_f32 v{t+i}, v{O+i*16+qb*4+r}, v{NM+4*qb+r}')
            a(f'v_cvt_pk_bf16_f32 v{t+4}, v{t}, v{t+1}\nv_cvt_pk_bf16_f32 v{t+5}, v{t+2}, v{t+3}')
            a(f'buffer_store_dwordx2 {vr(t+4,2)}, v240, s[{OUT}:{OUT+3}], s38 offen offset:{r*512}{o.get("out_aux","")}')
        if qb < 3: a('s_add_u32 s38, s38, 8192')
    if st:
        stamp(a, st, 6)
        a('s_waitcnt vmcnt(0)')
        stamp(a, st, 7)
        stamp_flush(a, st and not o.get('fine'), 8, WS, sW, 4, 240)
    a('La_done:\ns_endpgm')
    a('La_fallback:')
    a(f's_mov_b32 {sSecond}, 1\ns_mov_b32 {sK}, {sKb}\ns_mov_b32 {sCnt}, 32')
    a('s_waitcnt vmcnt(0) lgkmcnt(0)')
    a('La_fb_loop:')
    for s in range(8): a(kvload(s, sK)(s))
    a('s_waitcnt vmcnt(0)')
    for s in range(8):
        for qb in range(4):
            D = vr(S + qb * 4, 4)
            a(f'v_mfma_f32_16x16x32_bf16 {D}, {ar(aR+4*s,4)}, {ar(aQ+(qb*8+s)*4,4)}, {D if s else "0"}')
    a(f's_add_u32 {sK}, {sK}, 8192\ns_sub_u32 {sCnt}, {sCnt}, 1\ns_nop 7')
    for qb in range(4):
        x = S + qb * 4
        a(f'v_max3_f32 v{MF+qb}, v{x}, v{x+1}, v{MF+qb}\nv_max3_f32 v{MF+qb}, v{x+2}, v{x+3}, v{MF+qb}')
    a(f's_cmp_lg_u32 {sCnt}, 0\ns_cbranch_scc1 La_fb_loop')
    start_stream()
    for n in range(R - 1): a(kvload(n, sK)(n))
    a('s_barrier\ns_branch La_restart')
    return errs

HEADER = open('cdna_kernels/' + NAME + '.s.ref').read().split('; Override launch')[0]

def gen(o):
    a = Asm()
    a(HEADER.rstrip('\n'))
    a('; @launch kernel=prep_kernel grid=(256,1,1) block=(256,1,1) lds=32768')
    a(f'; @launch kernel={NAME}_kernel grid=(256,1,1) block=(256,1,1) lds=35840')
    a('.amdgcn_target "amdgcn-amd-amdhsa--gfx950"\n.text')
    gen_prep(a, o)
    errs = gen_attn(a, o)
    errs += hazcheck.check(a.lines, 'all')
    a(kernel_desc('prep_kernel', 256, 96, 256))
    a(kernel_desc(f'{NAME}_kernel', 512, 96, 256))
    return a.text(), errs

if __name__ == '__main__':
    o = {}
    outp = None
    for x in sys.argv[1:]:
        if '=' in x:
            k, v = x.split('=', 1)
            try: v = int(v)
            except ValueError: v = v.replace('_', ' ')
            o[k] = v
        else: outp = x
    txt, errs = gen(o)
    for e in errs: print(e)
    open(outp or 'v1.s', 'w').write(txt)
```

```python
import sys
from asmlib import *
import hazcheck

NAME = 'standalone__kv_cache_quant_pre_rope_vs_post_rope__prompt'
CSCALE = 0x3db8aa3b
SEL_E = 0x05040100
SEL_O = 0x07060302
STAMP_OFF = 128 << 20

class VM:
    def __init__(self, a): self.a = a; self.ops = []
    def issue(self, text, tag=None):
        self.a(text); self.ops.append(tag)
    def wait(self, *tags):
        last = max(i for i, t in enumerate(self.ops) if t in tags)
        n = len(self.ops) - 1 - last
        self.a(f's_waitcnt vmcnt({min(n,63)})')

def srd(a, base, kaoff, nbytes):
    a(f's_load_dwordx2 s[{base}:{base+1}], s[0:1], {kaoff}')
    return [f's_mov_b32 s{base+2}, {nbytes}', f's_mov_b32 s{base+3}, 0x00020000']

def stamp(a, on, idx):
    if on: a(f's_memrealtime s[{64+2*idx}:{65+2*idx}]')

def stamp_flush(a, on, n, srdws, swave, slot0, vtmp):
    if not on: return
    a('s_waitcnt lgkmcnt(0)')
    a(f's_lshl_b32 s60, s2, 2\ns_add_u32 s60, s60, {swave}\ns_lshl_b32 s60, s60, 7\ns_add_u32 s60, s60, {STAMP_OFF + slot0*8}')
    a(f's_mov_b32 s{srdws+2}, 0x10000000')
    a(f'v_mov_b32 v{vtmp}, 0')
    for i in range(n):
        a(f'v_mov_b32 v{vtmp+2}, s{64+2*i}\nv_mov_b32 v{vtmp+3}, s{65+2*i}')
        a(f'buffer_store_dwordx2 v[{vtmp+2}:{vtmp+3}], v{vtmp}, s[{srdws}:{srdws+3}], s60 offen offset:{8*i}')
        a('s_waitcnt vmcnt(0)')

def gen_prep(a, o):
    st = o.get('stamps')
    STK = o.get('prep_store', '')
    LDA = o.get('prep_load', '')
    a('.globl prep_kernel\n.p2align 8\n.type prep_kernel,@function\nprep_kernel:')
    a('s_cmp_ge_u32 s2, 256\ns_cbranch_scc1 Lp_done')
    stamp(a, st or o.get('spin'), 0)
    QK, KS, KZ, QV, VS, VZ, KC, KN, WS = 8, 12, 16, 20, 24, 28, 32, 36, 40
    post = []
    post += srd(a, QK, 8, 16 << 20); post += srd(a, KS, 16, 128 << 10); post += srd(a, KZ, 24, 128 << 10)
    post += srd(a, QV, 32, 16 << 20); post += srd(a, VS, 40, 128 << 10); post += srd(a, VZ, 48, 128 << 10)
    post += srd(a, KC, 72, 1 << 20); post += srd(a, KN, 80, 1 << 20); post += srd(a, WS, 104, 16 << 20)
    for s in post: a(s)
    vA, vB, vC, vD, vE, vL, vSel, vW0, vRe, vRo, vT = 1, 2, 3, 4, 5, 6, 7, 8, 9, 10, 11
    a('v_lshrrev_b32 v11, 6, v0\nv_and_b32 v0, 63, v0')
    a('v_lshlrev_b32 v6, 4, v0')
    a('v_readfirstlane_b32 s44, v11')
    a('v_lshrrev_b32 v12, 5, v0\nv_and_b32 v13, 31, v0')
    a('v_lshlrev_b32 v1, 13, v12\nv_lshl_add_u32 v1, v13, 4, v1')
    a('v_lshlrev_b32 v2, 12, v12\nv_lshl_add_u32 v2, v13, 3, v2')
    a('v_lshlrev_b32 v3, 6, v12')
    a('v_lshrrev_b32 v14, 4, v0\nv_and_b32 v15, 15, v0')
    a('v_lshlrev_b32 v4, 12, v14\nv_lshl_add_u32 v4, v15, 4, v4')
    a('v_lshlrev_b32 v5, 5, v14')
    a('s_and_b32 s45, s2, 7\ns_lshr_b32 s46, s2, 3\ns_and_b32 s47, s46, 7\ns_lshl_b32 s45, s45, 3\ns_add_u32 s45, s45, s47')
    a('s_lshr_b32 s46, s46, 3\ns_lshl_b32 s46, s46, 1\ns_lshr_b32 s47, s44, 1\ns_add_u32 s46, s46, s47')
    if o.get('hx'):
        a('s_and_b32 s46, s2, 7\ns_lshr_b32 s45, s2, 3\ns_lshl_b32 s45, s45, 1\ns_lshr_b32 s47, s44, 1\ns_add_u32 s45, s45, s47')
    a('s_and_b32 s47, s44, 1')
    a('s_lshl_b32 s48, s46, 11\ns_lshl_b32 s49, s45, 5\ns_add_u32 s48, s48, s49')
    a('s_lshl_b32 s50, s47, 4')
    a('s_add_u32 s51, s48, s50')
    a('s_lshl_b32 s52, s51, 10\ns_add_u32 s53, s52, 4096')
    a('s_add_u32 s54, s49, s50\ns_lshl_b32 s54, s54, 9')
    a('s_lshl_b32 s55, s51, 3')
    a('s_lshl_b32 s56, s48, 10\ns_lshl_b32 s57, s47, 9\ns_add_u32 s56, s56, s57\ns_add_u32 s57, s56, 16384')
    a('s_lshl_b32 s58, s48, 3\ns_lshl_b32 s59, s47, 2\ns_add_u32 s58, s58, s59')
    a('s_waitcnt lgkmcnt(0)')
    fine = o.get('fine')
    if fine: stamp(a, st, 4)
    vm = VM(a)
    BLK = 128
    rKS, rKZ, rVS, rVZ = 64, 80, 96, 112
    for i in range(4): vm.issue(f'buffer_load_dwordx4 {vr(rKS+4*i,4)}, v{vC}, s[{KS}:{KS+3}], s55 offen offset:{16*i}', 'ks')
    for i in range(4): vm.issue(f'buffer_load_dwordx4 {vr(rKZ+4*i,4)}, v{vC}, s[{KZ}:{KZ+3}], s55 offen offset:{16*i}', 'ks')
    for p in range(8):
        B = BLK + 16 * p
        so = 's52' if p < 4 else 's53'
        vm.issue(f'buffer_load_dwordx4 {vr(B,4)}, v{vA}, s[{QK}:{QK+3}], {so} offen offset:{(p%4)*1024}{LDA}', f'k{p}')
        vm.issue(f'buffer_load_dwordx4 {vr(B+4,4)}, v{vA}, s[{QK}:{QK+3}], {so} offen offset:{(p%4)*1024+512}{LDA}', f'k{p}')
        vm.issue(f'buffer_load_dwordx2 {vr(B+8,2)}, v{vB}, s[{KC}:{KC+3}], s54 offen offset:{p*512}{o.get("kc_aux","")}', f'k{p}')
        vm.issue(f'buffer_load_dwordx2 {vr(B+10,2)}, v{vB}, s[{KC}:{KC+3}], s54 offen offset:{p*512+256}{o.get("kc_aux","")}', f'k{p}')
        vm.issue(f'buffer_load_dwordx2 {vr(B+12,2)}, v{vB}, s[{KN}:{KN+3}], s54 offen offset:{p*512}{o.get("kc_aux","")}', f'k{p}')
        vm.issue(f'buffer_load_dwordx2 {vr(B+14,2)}, v{vB}, s[{KN}:{KN+3}], s54 offen offset:{p*512+256}{o.get("kc_aux","")}', f'k{p}')
    for i in range(4): vm.issue(f'buffer_load_dwordx4 {vr(rVS+4*i,4)}, v{vE}, s[{VS}:{VS+3}], s58 offen offset:{(i>>1)*128+(i&1)*16}', 'vs')
    for i in range(4): vm.issue(f'buffer_load_dwordx4 {vr(rVZ+4*i,4)}, v{vE}, s[{VZ}:{VZ+3}], s58 offen offset:{(i>>1)*128+(i&1)*16}', 'vs')
    a('v_lshrrev_b32 v16, 4, v13')
    a('v_mul_u32_u24 v16, 0x0202, v16\nv_lshlrev_b32 v16, 16, v16\nv_add_u32 v7, 0x01000c0c, v16')
    a('v_lshrrev_b32 v16, 3, v13\nv_bfe_u32 v17, v13, 1, 2\nv_and_b32 v18, 1, v13')
    a('v_lshlrev_b32 v8, 10, v16\nv_lshl_add_u32 v8, v17, 8, v8\nv_lshl_add_u32 v8, v12, 7, v8\nv_lshl_add_u32 v8, v18, 3, v8')
    a('v_and_b32 v16, 1, v16\nv_lshl_add_u32 v16, v16, 2, v17\nv_lshl_add_u32 v8, v16, 4, v8')
    a('s_lshl_b32 s59, s44, 13\nv_add_u32 v8, s59, v8')
    a('v_xor_b32 v16, v15, v14\nv_lshl_add_u32 v16, v14, 4, v16\nv_lshlrev_b32 v9, 4, v16\nv_add_u32 v9, s59, v9\nv_xor_b32 v10, 64, v9')
    a('s_lshr_b32 s60, s45, 2\ns_and_b32 s61, s45, 3')
    a('s_lshl_b32 s62, s46, 20\ns_lshl_b32 s60, s60, 14\ns_add_u32 s62, s62, s60')
    a('s_lshl_b32 s63, s61, 18\ns_add_u32 s63, s63, s62\ns_lshl_b32 s60, s47, 13\ns_add_u32 s63, s63, s60')
    a('s_add_u32 s3, s63, 4096')
    a('s_lshl_b32 s60, s47, 19\ns_add_u32 s62, s62, s60\ns_lshl_b32 s60, s61, 12\ns_add_u32 s62, s62, s60\ns_add_u32 s62, s62, 0x800000')
    a('s_add_u32 s61, s62, 0x40000')
    a(f's_mov_b32 s4, {CSCALE}\ns_mov_b32 s5, {SEL_E}\ns_mov_b32 s6, {SEL_O}')
    T0 = 16
    vload = [(gi, j) for gi in range(2) for j in range(8)]
    def vxreg(gi, j):
        n = gi * 8 + j
        return BLK + 16 * (n // 4) + 4 * (n % 4)
    for p in range(8):
        B = BLK + 16 * p
        if fine and p == 0:
            stamp(a, st, 5); vm.wait('ks'); stamp(a, st, 6)
        vm.wait(f'k{p}')
        if fine and p in (0, 1, 3, 5, 7): stamp(a, st, 7 + (0, 1, 3, 5, 7).index(p))
        sl, sh, zl, zh = T0, T0 + 1, T0 + 2, T0 + 3
        a(f'v_perm_b32 v{sl}, v{rKS+2*p}, v{rKS+2*p}, v{vSel}\nv_perm_b32 v{sh}, v{rKS+2*p+1}, v{rKS+2*p+1}, v{vSel}')
        a(f'v_perm_b32 v{zl}, v{rKZ+2*p}, v{rKZ+2*p}, v{vSel}\nv_perm_b32 v{zh}, v{rKZ+2*p+1}, v{rKZ+2*p+1}, v{vSel}')
        a(f'v_mul_f32 v{sl}, s4, v{sl}\nv_mul_f32 v{sh}, s4, v{sh}\nv_mul_f32 v{zl}, v{zl}, v{sl}\nv_mul_f32 v{zh}, v{zh}, v{sh}')
        for e in range(8): a(f'v_cvt_f32_i32 v{B+e}, v{B+e}')
        for e in range(4): a(f'v_fma_f32 v{B+e}, v{B+e}, v{sl}, -v{zl}')
        for e in range(4): a(f'v_fma_f32 v{B+4+e}, v{B+4+e}, v{sh}, -v{zh}')
        for e in range(4): a(f'v_cvt_pk_bf16_f32 v{B+e}, v{B+e}, v{B+4+e}')
        B1, B2 = T0 + 4, T0 + 8
        for e in range(4):
            sel = 's5' if e % 2 == 0 else 's6'
            a(f'v_perm_b32 v{B1+e}, v{B+12+e//2}, v{B+8+e//2}, {sel}')
            a(f'v_perm_b32 v{B2+e}, v{B+10+e//2}, v{B+14+e//2}, {sel}')
        for e in range(4): a(f'v_dot2_f32_bf16 v{B1+e}, v{B+e}, v{B1+e}, 0 neg_hi:[0,1,0]')
        for e in range(4): a(f'v_dot2_f32_bf16 v{B2+e}, v{B+e}, v{B2+e}, 0')
        O = T0 + 12 + 4 * (p % 2)
        a(f'v_xor_b32 v{vT}, {p*16}, v{vW0}')
        a(f'v_cvt_pk_bf16_f32 v{O}, v{B1}, v{B1+1}\nv_cvt_pk_bf16_f32 v{O+1}, v{B1+2}, v{B1+3}')
        a(f'ds_write_b64 v{vT}, {vr(O,2)}')
        a(f'v_cvt_pk_bf16_f32 v{O+2}, v{B2}, v{B2+1}\nv_cvt_pk_bf16_f32 v{O+3}, v{B2+2}, v{B2+3}')
        a(f'ds_write_b64 v{vT}, {vr(O+2,2)} offset:4096')
        if p < 4:
            for n in range(4 * p, 4 * p + 4):
                gi, j = vload[n]
                so = 's56' if j < 4 else 's57'
                vm.issue(f'buffer_load_dwordx4 {vr(vxreg(gi,j),4)}, v{vD}, s[{QV}:{QV+3}], {so} offen offset:{(j%4)*1024+gi*256}{LDA}', f'v{gi}')
    stamp(a, st, 1)
    a('s_waitcnt lgkmcnt(0)')
    KO = BLK + 64
    for s in range(8): a(f'ds_read_b128 {vr(KO+4*s,4)}, v{vRe if s%2==0 else vRo} offset:{s*1024}')
    for s in range(8):
        a(f's_waitcnt lgkmcnt({7-s})')
        vm.issue(f'buffer_store_dwordx4 {vr(KO+4*s,4)}, v{vL}, s[{WS}:{WS+3}], {"s63" if s<4 else "s3"} offen offset:{(s%4)*1024}{STK}', 'st')
    vm.wait('vs')
    SV, ZV = T0, T0 + 8
    VO = BLK + 96
    for gi in range(2):
        for j in range(8):
            src = 4 * (j // 2) + 2 * (j % 2)
            if gi == 0: a(f'v_lshlrev_b32 v{SV+j}, 16, v{rVS+src}\nv_lshlrev_b32 v{ZV+j}, 16, v{rVZ+src}')
            else: a(f'v_and_b32 v{SV+j}, 0xffff0000, v{rVS+src}\nv_and_b32 v{ZV+j}, 0xffff0000, v{rVZ+src}')
        for j in range(8): a(f'v_mul_f32 v{ZV+j}, v{ZV+j}, v{SV+j}')
        vm.wait(f'v{gi}')
        for j in range(8):
            x = vxreg(gi, j)
            for i in range(4): a(f'v_cvt_f32_i32 v{x+i}, v{x+i}')
            for i in range(4): a(f'v_fma_f32 v{x+i}, v{x+i}, v{SV+j}, -v{ZV+j}')
        for i in range(4):
            for jp in range(4):
                a(f'v_cvt_pk_bf16_f32 v{VO+16*gi+4*i+jp}, v{vxreg(gi,2*jp)+i}, v{vxreg(gi,2*jp+1)+i}')
            vm.issue(f'buffer_store_dwordx4 {vr(VO+16*gi+4*i,4)}, v{vL}, s[{WS}:{WS+3}], {"s62" if gi==0 else "s61"} offen offset:{i*1024}{STK}', 'st')
    if o.get('spin'):
        a('s_cmp_lg_u32 s2, 0\ns_cbranch_scc1 Lp_done\ns_cmp_lg_u32 s44, 0\ns_cbranch_scc1 Lp_done')
        stamp_flush(a, True, 1, WS, 's44', 0, 16)
    stamp(a, st, 2)
    if st:
        a('s_waitcnt vmcnt(0)')
        stamp(a, st, 3)
        stamp_flush(a, st, 12 if fine else 4, WS, 's44', 0, 16)
    a('Lp_done:\ns_endpgm')

class Sched:
    def __init__(self, n, cap=2):
        self.n = n; self.gap = [[] for _ in range(n)]; self.used = [0] * n; self.cap = cap; self.tail = [[] for _ in range(n)]
    def fixed(self, g, text, cost=1, tail=False):
        (self.tail if tail else self.gap)[g].append(text); self.used[g] += cost
    def place(self, items, start):
        g = start; out = []
        for text, cost, earliest in items:
            g = max(g, earliest)
            while self.used[g % self.n] + cost > self.cap: g += 1
            self.gap[g % self.n].append(text); self.used[g % self.n] += cost
            out.append(g)
        return out

def gen_attn(a, o):
    st = o.get('stamps')
    R = o.get('R', 8)
    AUX = o.get('kv_aux', '')
    K = f'{NAME}_kernel'
    a(f'.globl {K}\n.p2align 8\n.type {K},@function\n{K}:')
    a('s_cmp_ge_u32 s2, 256\ns_cbranch_scc1 La_done')
    stamp(a, st, 0)
    SQ, SC, SN, WS, OUT = 8, 12, 16, 20, 24
    post = []
    post += srd(a, SQ, 0, 8 << 20); post += srd(a, SC, 56, 1 << 20); post += srd(a, SN, 64, 1 << 20)
    post += srd(a, WS, 104, 16 << 20); post += srd(a, OUT, 88, 8 << 20)
    for s in post: a(s)
    vOff = 1
    vPw, vPr, vT = 5, 6, 7
    L = 8
    MF = 12
    NM = 16
    S = 32
    PO = 64
    O = 80
    QL = 144
    T0 = 240
    aQ, aR, aP = 0, 128, 224
    assert aR + 4 * R <= aP
    LP, LM, LL = 0, 32768, 33792
    sW, sK, sV, sVn, sKb, sCnt, sSecond, sT = 's28', 's29', 's30', 's31', 's32', 's33', 's34', 's35'
    a('v_lshrrev_b32 v7, 6, v0\nv_and_b32 v0, 63, v0')
    a('v_lshlrev_b32 v1, 4, v0')
    a(f'v_readfirstlane_b32 {sW}, v7')
    a('v_lshrrev_b32 v240, 4, v0\nv_and_b32 v241, 15, v0')
    a('v_lshlrev_b32 v242, 11, v240\nv_lshl_add_u32 v242, v241, 4, v242')
    a('s_and_b32 s36, s2, 7\ns_lshr_b32 s37, s2, 3')
    a(f's_lshl_b32 s38, s37, 2\ns_add_u32 s38, s38, {sW}\ns_lshl_b32 s38, s38, 13')
    a('s_lshl_b32 s39, s36, 20\ns_add_u32 s40, s39, s38')
    a(f's_lshl_b32 {sKb}, {sW}, 18\ns_add_u32 {sKb}, {sKb}, s39')
    a('s_waitcnt lgkmcnt(0)')
    vm = VM(a)
    for p in range(4):
        B = QL + 24 * p
        for n, (sd, so) in enumerate(((SQ, 's40'), (SC, 's38'), (SN, 's38'))):
            for hi in range(2):
                vm.issue(f'buffer_load_dwordx4 {vr(B+8*n+4*hi,4)}, v242, s[{sd}:{sd+3}], {so} offen offset:{p*512+hi*256}{o.get("q_aux","") if n==0 else o.get("qc_aux","")}', f'q{p}')
    a('v_add_u32 v2, 4096, v1\nv_add_u32 v3, 8192, v1\nv_add_u32 v4, 12288, v1')
    a(f's_mov_b32 {sSecond}, 0')
    for qb in range(4): a(f'v_mov_b32 v{MF+qb}, 0xff800000')
    def kvload(n, sreg):
        return lambda slot: f'buffer_load_dwordx4 {ar(aR+4*slot,4)}, v{vOff+n//4}, s[{WS}:{WS+3}], {sreg} offen offset:{(n%4)*1024}{AUX}'
    def start_stream():
        a(f's_and_b32 {sT}, s37, 15\ns_lshl_b32 {sT}, {sT}, 14\ns_add_u32 {sK}, {sKb}, {sT}')
    start_stream()
    for n in range(R - 1): vm.issue(kvload(n, sK)(n), 'kv')
    a(f's_mov_b32 s4, {SEL_E}\ns_mov_b32 s5, {SEL_O}')
    a('v_lshrrev_b32 v243, 2, v241\nv_and_b32 v244, 3, v241\nv_and_b32 v245, 7, v241')
    a('v_lshlrev_b32 v246, 2, v240\nv_xor_b32 v246, v246, v245\nv_lshl_add_u32 v246, v244, 4, v246\nv_lshlrev_b32 v246, 4, v246')
    a(f'v_lshl_add_u32 v246, v243, 10, v246\ns_lshl_b32 {sT}, {sW}, 13\nv_add_u32 v246, {sT}, v246')
    a('v_xor_b32 v247, v241, v240\nv_lshl_add_u32 v247, v240, 4, v247\nv_lshlrev_b32 v247, 4, v247\nv_xor_b32 v248, 64, v247')
    TA = S
    for p in range(4):
        B = QL + 24 * p
        vm.wait(f'q{p}')
        ql, qh, cl_, ch, sl, sh = B, B + 4, B + 8, B + 12, B + 16, B + 20
        for k in range(4):
            t = TA + 8 * (k % 2)
            for e, sel in enumerate(('s4', 's5')):
                a(f'v_perm_b32 v{t+e}, v{qh+k}, v{ql+k}, {sel}')
                a(f'v_perm_b32 v{t+2+e}, v{sl+k}, v{cl_+k}, {sel}')
                a(f'v_perm_b32 v{t+4+e}, v{ch+k}, v{sh+k}, {sel}')
            for e in range(2): a(f'v_dot2_f32_bf16 v{t+2+e}, v{t+e}, v{t+2+e}, 0 neg_hi:[0,1,0]')
            for e in range(2): a(f'v_dot2_f32_bf16 v{t+4+e}, v{t+e}, v{t+4+e}, 0')
            if k > 0:
                tp = TA + 8 * ((k - 1) % 2)
            a('s_nop 0')
            a(f'v_cvt_pk_bf16_f32 v{ql+k}, v{t+2}, v{t+3}') if False else None
            if k > 0:
                a(f'v_cvt_pk_bf16_f32 v{ql+k-1}, v{tp+2}, v{tp+3}\nv_cvt_pk_bf16_f32 v{qh+k-1}, v{tp+4}, v{tp+5}')
        t = TA + 8
        a(f'v_xor_b32 v{vT}, {p*16}, v246\ns_nop 0')
        a(f'v_cvt_pk_bf16_f32 v{ql+3}, v{t+2}, v{t+3}\nv_cvt_pk_bf16_f32 v{qh+3}, v{t+4}, v{t+5}')
        a(f'ds_write_b128 v{vT}, {vr(ql,4)}\nds_write_b128 v{vT}, {vr(qh,4)} offset:4096')
    a('s_waitcnt lgkmcnt(0)\ns_barrier')
    for s in range(8):
        for qb in range(4):
            a(f'ds_read_b128 {ar(aQ+(qb*8+s)*4,4)}, v{247 if s%2==0 else 248} offset:{qb*8192+s*1024}')
    stamp(a, st, 1)
    a('La_restart:')
    a(f's_lshl_b32 {sT}, {sW}, 12\ns_add_u32 {sT}, {sT}, {LP}\nv_add_u32 v{vPw}, {sT}, v1\nv_add_u32 v{vPr}, {LP}, v1')
    for i in range(64): a(f'v_mov_b32 v{O+i}, 0')
    for qb in range(4): a(f'v_mov_b32 v{L+qb}, 0')

    def qk_mfma(n, first_c):
        f, qb = n // 4, n % 4
        kb, s = f // 8, f % 8
        D = vr(S + kb * 16 + qb * 4, 4)
        C = D if s else first_c(qb)
        return f'v_mfma_f32_16x16x32_bf16 {D}, {ar(aR+4*(f%R),4)}, {ar(aQ+(qb*8+s)*4,4)}, {C}'
    def pv_mfma(n, f0):
        f, qb = n // 4, n % 4
        u, i = f // 4, f % 4
        D = vr(O + i * 16 + qb * 4, 4)
        return f'v_mfma_f32_16x16x32_bf16 {D}, {ar(aP+(u%2)*16+qb*4,4)}, {ar(aR+4*((f0+f)%R),4)}, {D}'
    adv_k = [f's_add_u32 {sVn}, {sK}, 0x800000', f's_add_u32 {sK}, {sK}, 16384', f's_and_b32 {sK}, {sK}, 0x3ffff', f's_or_b32 {sK}, {sK}, {sKb}']
    a(f's_waitcnt vmcnt({R-2}) lgkmcnt(0)')
    for n in range(64):
        a(qk_mfma(n, lambda qb: '0'))
        f = n // 4
        if n % 4 == 0:
            m = f - 1 + R
            a(kvload(m % 16, sK)(m % R))
            if m == 15:
                for s in adv_k: a(s)
                a(f's_mov_b32 {sV}, {sVn}')
        if n % 4 == 3: a(f's_waitcnt vmcnt({R-2})')
    assert 16 % R == 0 or True
    F0 = 16 % R
    assert 32 % R == 0 and F0 == 0
    stamp(a, st, 2)
    a('s_nop 4')
    for qb in range(4):
        x = S + qb * 4; y = S + 16 + qb * 4
        a(f'v_max3_f32 v{T0+qb}, v{x}, v{x+1}, v{MF+qb}')
        a(f'v_max3_f32 v{T0+qb}, v{x+2}, v{x+3}, v{T0+qb}')
    for qb in range(4):
        y = S + 16 + qb * 4
        a(f'v_max3_f32 v{T0+qb}, v{y}, v{y+1}, v{T0+qb}')
        a(f'v_max3_f32 v{T0+qb}, v{y+2}, v{y+3}, v{T0+qb}')
    def xreduce(op, r):
        a('s_nop 1')
        a(f'v_permlane16_swap_b32 v{r}, v{r+1}\nv_permlane16_swap_b32 v{r+2}, v{r+3}')
        a(f'{op} v{r}, v{r}, v{r+1}\n{op} v{r+2}, v{r+2}, v{r+3}')
        a('s_nop 1')
        a(f'v_permlane32_swap_b32 v{r}, v{r+2}')
        a(f'{op} v{r}, v{r}, v{r+2}')
    xreduce('v_max_f32', T0)
    a(f's_lshl_b32 {sT}, {sW}, 2\nv_add_u32 v{vT}, {sT}, v1')
    a(f'ds_write_b32 v{vT}, v{T0} offset:{LM}')
    a(f'v_and_b32 v{vT}, 0xf0, v1')
    a('s_waitcnt lgkmcnt(0)\ns_barrier')
    for qb in range(4): a(f'ds_read_b128 {vr(NM+4*qb,4)}, v{vT} offset:{LM+qb*256}')
    for qb in range(4):
        a(f's_waitcnt lgkmcnt({3-qb})')
        x = NM + 4 * qb
        a(f'v_max3_f32 v{x}, v{x}, v{x+1}, v{x+2}\nv_max_f32 v{x}, v{x}, v{x+3}\nv_sub_f32 v{x}, 0, v{x}')
        a(f'v_mov_b32 v{x+1}, v{x}\nv_mov_b32 v{x+2}, v{x}\nv_mov_b32 v{x+3}, v{x}')
        for kb in range(2):
            for r in range(4): a(f'v_add_f32 v{S+kb*16+qb*4+r}, v{x}, v{S+kb*16+qb*4+r}')

    sc = Sched(128)
    for f in range(32):
        m = f - 1 + R
        if m < 16: ld = kvload(m, sK)
        elif m < 32: ld = kvload(m - 16, sV)
        else: ld = kvload(m - 32, sK)
        sc.fixed(4 * f, ld(m % R), 2)
        sc.fixed(4 * f + 3, f's_waitcnt vmcnt({R-2})', 1, tail=True)
    def soft(kb, qb):
        x = S + kb * 16 + qb * 4
        it = [(f'v_exp_f32 v{x+r}, v{x+r}', 2) for r in range(4)]
        it += [(f'v_add_f32 v{L+qb}, v{L+qb}, v{x}', 1), (f'v_add_f32 v{L+qb}, v{L+qb}, v{x+1}', 1),
               (f'v_cvt_pk_bf16_f32 v{PO+qb*4+kb*2}, v{x}, v{x+1}', 1),
               (f'v_add_f32 v{L+qb}, v{L+qb}, v{x+2}', 1), (f'v_add_f32 v{L+qb}, v{L+qb}, v{x+3}', 1),
               (f'v_cvt_pk_bf16_f32 v{PO+qb*4+kb*2+1}, v{x+2}, v{x+3}', 1)]
        return it
    GB = o.get('gbar', 34)
    pread = lambda u, qb: f'ds_read_b128 {ar(aP+(u%2)*16+qb*4,4)}, v{vPr} offset:{u*4096+qb*1024}'
    sc.fixed(GB, 's_waitcnt lgkmcnt(0)', 1); sc.fixed(GB, 's_barrier', 1)
    rd_gaps = {0: [39, 43, 47, 51], 1: [55, 59, 63, 67], 2: [83, 87, 89, 91], 3: [99, 103, 105, 107]}
    for u in range(4):
        for qb in range(4): sc.fixed(rd_gaps[u][qb], pread(u, qb), 1)
    sc.fixed(62, 's_waitcnt lgkmcnt(2)', 1)
    sc.fixed(79, 's_waitcnt lgkmcnt(0)', 1)
    sc.fixed(95, 's_waitcnt lgkmcnt(0)', 1)
    sc.fixed(111, 's_waitcnt lgkmcnt(0)', 1)
    gk = 4 * (16 - R) + 1
    salu_items = [(s, 1, gk) for s in adv_k] + [(f's_cmp_eq_u32 {sCnt}, 1', 1, gk), (f's_cselect_b32 {sK}, {sVn}, {sK}', 1, gk)]
    gv = 4 * (32 - R) + 1
    loop_salu = [(f's_mov_b32 {sV}, {sVn}', 1, gv), (f'v_xor_b32 v{vPr}, 16384, v{vPr}', 1, 113), (f's_sub_u32 {sCnt}, {sCnt}, 1', 1, 113)]
    items = []
    for kb in range(2):
        for qb in range(4):
            e = (28 if kb == 0 else 60) + qb + 6
            items += [(t, c, e, kb, qb) for t, c in soft(kb, qb)]
    g_exp = 0; placed = []
    exps = [x for x in items if x[1] == 2]; singles = [x for x in items if x[1] == 1]
    sc.place(salu_items, gk)
    sc.place(loop_salu, gv)
    ge = sc.place([(t, c, e) for t, c, e, kb, qb in exps], 0)
    last_exp = {}
    first2 = {}
    for (t, c, e, kb, qb), g in zip(exps, ge):
        last_exp[(kb, qb)] = g
        first2.setdefault((kb, qb), []).append(g)
    sit = []
    for idx, (t, c, e, kb, qb) in enumerate(singles):
        k = idx % 6
        dep = first2[(kb, qb)][1] if k < 3 else first2[(kb, qb)][3]
        sit.append((t, c, dep + 1))
    gs = sc.place(sit, 0)
    lastcvt = {qb: gs[(4 + qb) * 6 + 5] for qb in range(4)}
    wr = [(f'ds_write_b128 v{vPw}, {vr(PO+4*qb,4)} offset:{qb*1024}', 2, lastcvt[qb] + 1) for qb in range(4)]
    gw = sc.place(wr, 0)
    sc.place([(f'v_xor_b32 v{vPw}, 16384, v{vPw}', 1, gw[-1] + 1)], 0)
    info = dict(exp=(ge[0], ge[-1]), single=(gs[0], gs[-1]), wr=gw)
    assert gw[-1] < 128 + GB, info
    assert max(gs[:24]) < 128, info
    assert max(gs) < 128 + 32, info
    soft_texts = set(t for t, c, e, kb, qb in items)
    gap_of = {}
    for (t, c, e, kb, qb), g in zip(exps, ge): gap_of[t] = g
    pre = [(g, 0, t) for (t, c, e, kb, qb), g in zip(exps, ge) if g < 128] + [(g, 1, t) for (t, c, e), g in zip(sit, gs) if g < 128]
    pre += [(g, 2, t) for (t, c, e), g in zip(wr, gw) if g < 128]
    assert all(g >= 128 for g in gw) or True
    pre.sort(key=lambda x: (x[0], x[1]))
    prev_trans = None
    for g, k, t in pre:
        a(t)
    a('s_nop 0')
    early_wr = [g < 128 for g in gw]
    a(f's_mov_b32 {sCnt}, 15')
    stamp(a, st, 3)
    a('.p2align 6\nLa_loop:')
    body = []
    for n in range(128):
        body.append(qk_mfma(n, lambda qb: vr(NM + 4 * qb, 4)) if n < 64 else pv_mfma(n - 64, 16))
        body += sc.gap[n] + sc.tail[n]
    body += [f's_cmp_lg_u32 {sCnt}, 0', 's_cbranch_scc1 La_loop']
    for t in body: a(t)
    errs = hazcheck.check(body + body, 'loop')
    stamp(a, st, 4)
    post = [(g, 0, t) for (t, c, e, kb, qb), g in zip(exps, ge) if g >= 128] + [(g, 1, t) for (t, c, e), g in zip(sit, gs) if g >= 128]
    post += [(g, 2, t) for (t, c, e), g in zip(wr, gw) if g >= 128]
    post.sort(key=lambda x: (x[0], x[1]))
    for g, k, t in post:
        a(t)
        if k == 0: a('s_nop 0')
    a('s_waitcnt lgkmcnt(0)\ns_barrier')
    for u in range(2):
        for qb in range(4): a(pread(u, qb))
    for qb in range(4): a(f'v_mov_b32 v{T0+qb}, v{L+qb}')
    xreduce('v_add_f32', T0)
    a(f's_lshl_b32 {sT}, {sW}, 2\nv_add_u32 v{vT}, {sT}, v1')
    a(f'ds_write_b32 v{vT}, v{T0} offset:{LL}')
    a('s_waitcnt lgkmcnt(5)')
    for n in range(64):
        a(pv_mfma(n, 0))
        f = n // 4
        if n % 4 == 0:
            m = f - 1 + R
            if m < 16: a(kvload(m, sK)(m % R))
        if n % 4 == 3 and f < 15:
            a(f's_waitcnt vmcnt({max(0, min(R-2, 14-f))})')
        if n == 15: a('s_waitcnt lgkmcnt(0)\ns_barrier')
        if n in (17, 18, 19, 21): a(pread(2, (17, 18, 19, 21).index(n)))
        if n == 22: a(f'ds_read_b128 {vr(T0,4)}, v1 offset:{LL}')
        if n == 31: a('s_waitcnt lgkmcnt(0)')
        if n in (33, 34, 35, 37): a(pread(3, (33, 34, 35, 37).index(n)))
        if n == 38:
            a(f'v_add_f32 v{T0}, v{T0}, v{T0+1}\nv_add_f32 v{T0+2}, v{T0+2}, v{T0+3}')
        if n == 39: a(f'v_add_f32 v{T0}, v{T0}, v{T0+2}')
        if n == 41: a(f'v_rcp_f32 v{T0+1}, v{T0}')
        if n == 42: a(f's_lshl_b32 {sT}, {sW}, 8\nv_lshrrev_b32 v{vT}, 2, v1')
        if n == 43: a(f'v_add_u32 v{vT}, {sT}, v{vT}')
        if n == 45: a(f'ds_write_b32 v{vT}, v{T0+1} offset:{LL+1024}')
        if n == 46: a(f's_mov_b32 s36, 0x4f800000\nv_lshrrev_b32 v{vT}, 4, v1')
        if n == 47: a('s_waitcnt lgkmcnt(0)')
        if n == 49: a(f'v_cmp_nle_f32 vcc, v{T0}, s36') if False else a(f'v_cmp_nge_f32 vcc, s36, v{T0}')
        if n == 50: a(f'v_and_b32 v{vT}, 0x30, v{vT}')
        if n == 51: a(f'v_add_u32 v{vT}, {sT}, v{vT}')
        if n in (53, 54, 55, 57): qb = (53, 54, 55, 57).index(n); a(f'ds_read_b128 {vr(NM+4*qb,4)}, v{vT} offset:{LL+1024+qb*64}')
    stamp(a, st, 5)
    a(f's_cmp_lg_u32 {sSecond}, 0\ns_cbranch_scc1 La_store')
    a('s_cbranch_vccnz La_fallback')
    a('La_store:')
    a('v_lshrrev_b32 v240, 4, v0\nv_and_b32 v241, 15, v0\nv_lshlrev_b32 v240, 11, v240\nv_lshl_add_u32 v240, v241, 3, v240')
    a(f's_lshl_b32 s38, s37, 15\ns_add_u32 s38, s38, s39\ns_lshl_b32 {sT}, {sW}, 7\ns_add_u32 s38, s38, {sT}')
    a('s_waitcnt lgkmcnt(0)')
    for qb in range(4):
        for r in range(4):
            t = S + 8 * (r % 2) + 16 * (qb % 2)
            for i in range(4): a(f'v_mul_f32 v{t+i}, v{O+i*16+qb*4+r}, v{NM+4*qb+r}')
            a(f'v_cvt_pk_bf16_f32 v{t+4}, v{t}, v{t+1}\nv_cvt_pk_bf16_f32 v{t+5}, v{t+2}, v{t+3}')
            a(f'buffer_store_dwordx2 {vr(t+4,2)}, v240, s[{OUT}:{OUT+3}], s38 offen offset:{r*512}{o.get("out_aux","")}')
        if qb < 3: a('s_add_u32 s38, s38, 8192')
    if o.get('spin'):
        a(f's_cmp_lg_u32 s2, 0\ns_cbranch_scc1 La_done\ns_cmp_lg_u32 {sW}, 0\ns_cbranch_scc1 La_done')
        a(f's_load_dwordx2 s[40:41], s[0:1], 104\ns_waitcnt lgkmcnt(0)\ns_add_u32 s40, s40, {STAMP_OFF}\ns_addc_u32 s41, s41, 0')
        a(f's_load_dwordx2 s[42:43], s[40:41], 0\ns_mov_b32 s46, 200000\ns_waitcnt lgkmcnt(0)')
        a('La_spin:\ns_memrealtime s[44:45]\ns_waitcnt lgkmcnt(0)\ns_sub_u32 s44, s44, s42\ns_sub_u32 s46, s46, 1\ns_cmp_eq_u32 s46, 0\ns_cbranch_scc1 La_done')
        a(f's_cmp_lt_u32 s44, {o["spin"]}\ns_cbranch_scc1 La_spin')
    if st:
        stamp(a, st, 6)
        a('s_waitcnt vmcnt(0)')
        stamp(a, st, 7)
        stamp_flush(a, st and not o.get('fine'), 8, WS, sW, 4, 240)
    a('La_done:\ns_endpgm')
    a('La_fallback:')
    a(f's_mov_b32 {sSecond}, 1\ns_mov_b32 {sK}, {sKb}\ns_mov_b32 {sCnt}, 32')
    a('s_waitcnt vmcnt(0) lgkmcnt(0)')
    a('La_fb_loop:')
    for s in range(8): a(kvload(s, sK)(s))
    a('s_waitcnt vmcnt(0)')
    for s in range(8):
        for qb in range(4):
            D = vr(S + qb * 4, 4)
            a(f'v_mfma_f32_16x16x32_bf16 {D}, {ar(aR+4*s,4)}, {ar(aQ+(qb*8+s)*4,4)}, {D if s else "0"}')
    a(f's_add_u32 {sK}, {sK}, 8192\ns_sub_u32 {sCnt}, {sCnt}, 1\ns_nop 7')
    for qb in range(4):
        x = S + qb * 4
        a(f'v_max3_f32 v{MF+qb}, v{x}, v{x+1}, v{MF+qb}\nv_max3_f32 v{MF+qb}, v{x+2}, v{x+3}, v{MF+qb}')
    a(f's_cmp_lg_u32 {sCnt}, 0\ns_cbranch_scc1 La_fb_loop')
    start_stream()
    for n in range(R - 1): a(kvload(n, sK)(n))
    a('s_barrier\ns_branch La_restart')
    return errs

HEADER = open('cdna_kernels/' + NAME + '.s.ref').read().split('; Override launch')[0]

def gen(o):
    a = Asm()
    a(HEADER.rstrip('\n'))
    a('; @launch kernel=prep_kernel grid=(256,1,1) block=(256,1,1) lds=32768')
    a(f'; @launch kernel={NAME}_kernel grid=(256,1,1) block=(256,1,1) lds=35840')
    a('.amdgcn_target "amdgcn-amd-amdhsa--gfx950"\n.text')
    gen_prep(a, o)
    errs = gen_attn(a, o)
    errs += hazcheck.check(a.lines, 'all')
    a(kernel_desc('prep_kernel', 256, 96, 256))
    a(kernel_desc(f'{NAME}_kernel', 512, 96, 256))
    return a.text(), errs

if __name__ == '__main__':
    o = {}
    outp = None
    for x in sys.argv[1:]:
        if '=' in x:
            k, v = x.split('=', 1)
            try: v = int(v)
            except ValueError: v = v.replace('_', ' ')
            o[k] = v
        else: outp = x
    txt, errs = gen(o)
    for e in errs: print(e)
    open(outp or 'v1.s', 'w').write(txt)
```

```python
import sys
from asmlib import *
import hazcheck

NAME = 'standalone__kv_cache_quant_pre_rope_vs_post_rope__prompt'
CSCALE = 0x3db8aa3b
SEL_E = 0x05040100
SEL_O = 0x07060302
STAMP_OFF = 128 << 20

class VM:
    def __init__(self, a): self.a = a; self.ops = []
    def issue(self, text, tag=None):
        self.a(text); self.ops.append(tag)
    def wait(self, *tags):
        last = max(i for i, t in enumerate(self.ops) if t in tags)
        n = len(self.ops) - 1 - last
        self.a(f's_waitcnt vmcnt({min(n,63)})')

def srd(a, base, kaoff, nbytes):
    a(f's_load_dwordx2 s[{base}:{base+1}], s[0:1], {kaoff}')
    return [f's_mov_b32 s{base+2}, {nbytes}', f's_mov_b32 s{base+3}, 0x00020000']

def stamp(a, on, idx):
    if on: a(f's_memrealtime s[{64+2*idx}:{65+2*idx}]')

def stamp_flush(a, on, n, srdws, swave, slot0, vtmp):
    if not on: return
    a('s_waitcnt lgkmcnt(0)')
    a(f's_lshl_b32 s60, s2, 2\ns_add_u32 s60, s60, {swave}\ns_lshl_b32 s60, s60, 7\ns_add_u32 s60, s60, {STAMP_OFF + slot0*8}')
    a(f's_mov_b32 s{srdws+2}, 0x10000000')
    a(f'v_mov_b32 v{vtmp}, 0')
    for i in range(n):
        a(f'v_mov_b32 v{vtmp+2}, s{64+2*i}\nv_mov_b32 v{vtmp+3}, s{65+2*i}')
        a(f'buffer_store_dwordx2 v[{vtmp+2}:{vtmp+3}], v{vtmp}, s[{srdws}:{srdws+3}], s60 offen offset:{8*i}')
        a('s_waitcnt vmcnt(0)')

def gen_prep(a, o):
    st = o.get('stamps')
    STK = o.get('prep_store', '')
    LDA = o.get('prep_load', '')
    a('.globl prep_kernel\n.p2align 8\n.type prep_kernel,@function\nprep_kernel:')
    a('s_cmp_ge_u32 s2, 256\ns_cbranch_scc1 Lp_done')
    stamp(a, st or o.get('spin'), 0)
    QK, KS, KZ, QV, VS, VZ, KC, KN, WS = 8, 12, 16, 20, 24, 28, 32, 36, 40
    post = []
    post += srd(a, QK, 8, 16 << 20); post += srd(a, KS, 16, 128 << 10); post += srd(a, KZ, 24, 128 << 10)
    post += srd(a, QV, 32, 16 << 20); post += srd(a, VS, 40, 128 << 10); post += srd(a, VZ, 48, 128 << 10)
    post += srd(a, KC, 72, 1 << 20); post += srd(a, KN, 80, 1 << 20); post += srd(a, WS, 104, 16 << 20)
    for s in post: a(s)
    vA, vB, vC, vD, vE, vL, vSel, vW0, vRe, vRo, vT = 1, 2, 3, 4, 5, 6, 7, 8, 9, 10, 11
    a('v_lshrrev_b32 v11, 6, v0\nv_and_b32 v0, 63, v0')
    a('v_lshlrev_b32 v6, 4, v0')
    a('v_readfirstlane_b32 s44, v11')
    a('v_lshrrev_b32 v12, 5, v0\nv_and_b32 v13, 31, v0')
    a('v_lshlrev_b32 v1, 13, v12\nv_lshl_add_u32 v1, v13, 4, v1')
    a('v_lshlrev_b32 v2, 12, v12\nv_lshl_add_u32 v2, v13, 3, v2')
    a('v_lshlrev_b32 v3, 6, v12')
    a('v_lshrrev_b32 v14, 4, v0\nv_and_b32 v15, 15, v0')
    a('v_lshlrev_b32 v4, 12, v14\nv_lshl_add_u32 v4, v15, 4, v4')
    a('v_lshlrev_b32 v5, 5, v14')
    a('s_and_b32 s45, s2, 7\ns_lshr_b32 s46, s2, 3\ns_and_b32 s47, s46, 7\ns_lshl_b32 s45, s45, 3\ns_add_u32 s45, s45, s47')
    a('s_lshr_b32 s46, s46, 3\ns_lshl_b32 s46, s46, 1\ns_lshr_b32 s47, s44, 1\ns_add_u32 s46, s46, s47')
    if o.get('hx'):
        a('s_and_b32 s46, s2, 7\ns_lshr_b32 s45, s2, 3\ns_lshl_b32 s45, s45, 1\ns_lshr_b32 s47, s44, 1\ns_add_u32 s45, s45, s47')
    a('s_and_b32 s47, s44, 1')
    a('s_lshl_b32 s48, s46, 11\ns_lshl_b32 s49, s45, 5\ns_add_u32 s48, s48, s49')
    a('s_lshl_b32 s50, s47, 4')
    a('s_add_u32 s51, s48, s50')
    a('s_lshl_b32 s52, s51, 10\ns_add_u32 s53, s52, 4096')
    a('s_add_u32 s54, s49, s50\ns_lshl_b32 s54, s54, 9')
    a('s_lshl_b32 s55, s51, 3')
    a('s_lshl_b32 s56, s48, 10\ns_lshl_b32 s57, s47, 9\ns_add_u32 s56, s56, s57\ns_add_u32 s57, s56, 16384')
    a('s_lshl_b32 s58, s48, 3\ns_lshl_b32 s59, s47, 2\ns_add_u32 s58, s58, s59')
    a('s_waitcnt lgkmcnt(0)')
    fine = o.get('fine')
    if fine: stamp(a, st, 4)
    vm = VM(a)
    BLK = 128
    rKS, rKZ, rVS, rVZ = 64, 80, 96, 112
    for i in range(4): vm.issue(f'buffer_load_dwordx4 {vr(rKS+4*i,4)}, v{vC}, s[{KS}:{KS+3}], s55 offen offset:{16*i}', 'ks')
    for i in range(4): vm.issue(f'buffer_load_dwordx4 {vr(rKZ+4*i,4)}, v{vC}, s[{KZ}:{KZ+3}], s55 offen offset:{16*i}', 'ks')
    for p in range(8):
        B = BLK + 16 * p
        so = 's52' if p < 4 else 's53'
        vm.issue(f'buffer_load_dwordx4 {vr(B,4)}, v{vA}, s[{QK}:{QK+3}], {so} offen offset:{(p%4)*1024}{LDA}', f'k{p}')
        vm.issue(f'buffer_load_dwordx4 {vr(B+4,4)}, v{vA}, s[{QK}:{QK+3}], {so} offen offset:{(p%4)*1024+512}{LDA}', f'k{p}')
        vm.issue(f'buffer_load_dwordx2 {vr(B+8,2)}, v{vB}, s[{KC}:{KC+3}], s54 offen offset:{p*512}{o.get("kc_aux","")}', f'k{p}')
        vm.issue(f'buffer_load_dwordx2 {vr(B+10,2)}, v{vB}, s[{KC}:{KC+3}], s54 offen offset:{p*512+256}{o.get("kc_aux","")}', f'k{p}')
        vm.issue(f'buffer_load_dwordx2 {vr(B+12,2)}, v{vB}, s[{KN}:{KN+3}], s54 offen offset:{p*512}{o.get("kc_aux","")}', f'k{p}')
        vm.issue(f'buffer_load_dwordx2 {vr(B+14,2)}, v{vB}, s[{KN}:{KN+3}], s54 offen offset:{p*512+256}{o.get("kc_aux","")}', f'k{p}')
    for i in range(4): vm.issue(f'buffer_load_dwordx4 {vr(rVS+4*i,4)}, v{vE}, s[{VS}:{VS+3}], s58 offen offset:{(i>>1)*128+(i&1)*16}', 'vs')
    for i in range(4): vm.issue(f'buffer_load_dwordx4 {vr(rVZ+4*i,4)}, v{vE}, s[{VZ}:{VZ+3}], s58 offen offset:{(i>>1)*128+(i&1)*16}', 'vs')
    a('v_lshrrev_b32 v16, 4, v13')
    a('v_mul_u32_u24 v16, 0x0202, v16\nv_lshlrev_b32 v16, 16, v16\nv_add_u32 v7, 0x01000c0c, v16')
    a('v_lshrrev_b32 v16, 3, v13\nv_bfe_u32 v17, v13, 1, 2\nv_and_b32 v18, 1, v13')
    a('v_lshlrev_b32 v8, 10, v16\nv_lshl_add_u32 v8, v17, 8, v8\nv_lshl_add_u32 v8, v12, 7, v8\nv_lshl_add_u32 v8, v18, 3, v8')
    a('v_and_b32 v16, 1, v16\nv_lshl_add_u32 v16, v16, 2, v17\nv_lshl_add_u32 v8, v16, 4, v8')
    a('s_lshl_b32 s59, s44, 13\nv_add_u32 v8, s59, v8')
    a('v_xor_b32 v16, v15, v14\nv_lshl_add_u32 v16, v14, 4, v16\nv_lshlrev_b32 v9, 4, v16\nv_add_u32 v9, s59, v9\nv_xor_b32 v10, 64, v9')
    a('s_lshr_b32 s60, s45, 2\ns_and_b32 s61, s45, 3')
    a('s_lshl_b32 s62, s46, 20\ns_lshl_b32 s60, s60, 14\ns_add_u32 s62, s62, s60')
    a('s_lshl_b32 s63, s61, 18\ns_add_u32 s63, s63, s62\ns_lshl_b32 s60, s47, 13\ns_add_u32 s63, s63, s60')
    a('s_add_u32 s3, s63, 4096')
    a('s_lshl_b32 s60, s47, 19\ns_add_u32 s62, s62, s60\ns_lshl_b32 s60, s61, 12\ns_add_u32 s62, s62, s60\ns_add_u32 s62, s62, 0x800000')
    a('s_add_u32 s61, s62, 0x40000')
    a(f's_mov_b32 s4, {CSCALE}\ns_mov_b32 s5, {SEL_E}\ns_mov_b32 s6, {SEL_O}')
    T0 = 16
    vload = [(gi, j) for gi in range(2) for j in range(8)]
    def vxreg(gi, j):
        n = gi * 8 + j
        return BLK + 16 * (n // 4) + 4 * (n % 4)
    for p in range(8):
        B = BLK + 16 * p
        if fine and p == 0:
            stamp(a, st, 5); vm.wait('ks'); stamp(a, st, 6)
        vm.wait(f'k{p}')
        if fine and p in (0, 1, 3, 5, 7): stamp(a, st, 7 + (0, 1, 3, 5, 7).index(p))
        sl, sh, zl, zh = T0, T0 + 1, T0 + 2, T0 + 3
        a(f'v_perm_b32 v{sl}, v{rKS+2*p}, v{rKS+2*p}, v{vSel}\nv_perm_b32 v{sh}, v{rKS+2*p+1}, v{rKS+2*p+1}, v{vSel}')
        a(f'v_perm_b32 v{zl}, v{rKZ+2*p}, v{rKZ+2*p}, v{vSel}\nv_perm_b32 v{zh}, v{rKZ+2*p+1}, v{rKZ+2*p+1}, v{vSel}')
        a(f'v_mul_f32 v{sl}, s4, v{sl}\nv_mul_f32 v{sh}, s4, v{sh}\nv_mul_f32 v{zl}, v{zl}, v{sl}\nv_mul_f32 v{zh}, v{zh}, v{sh}')
        for e in range(8): a(f'v_cvt_f32_i32 v{B+e}, v{B+e}')
        for e in range(4): a(f'v_fma_f32 v{B+e}, v{B+e}, v{sl}, -v{zl}')
        for e in range(4): a(f'v_fma_f32 v{B+4+e}, v{B+4+e}, v{sh}, -v{zh}')
        for e in range(4): a(f'v_cvt_pk_bf16_f32 v{B+e}, v{B+e}, v{B+4+e}')
        B1, B2 = T0 + 4, T0 + 8
        for e in range(4):
            sel = 's5' if e % 2 == 0 else 's6'
            a(f'v_perm_b32 v{B1+e}, v{B+12+e//2}, v{B+8+e//2}, {sel}')
            a(f'v_perm_b32 v{B2+e}, v{B+10+e//2}, v{B+14+e//2}, {sel}')
        for e in range(4): a(f'v_dot2_f32_bf16 v{B1+e}, v{B+e}, v{B1+e}, 0 neg_hi:[0,1,0]')
        for e in range(4): a(f'v_dot2_f32_bf16 v{B2+e}, v{B+e}, v{B2+e}, 0')
        O = T0 + 12 + 4 * (p % 2)
        a(f'v_xor_b32 v{vT}, {p*16}, v{vW0}')
        a(f'v_cvt_pk_bf16_f32 v{O}, v{B1}, v{B1+1}\nv_cvt_pk_bf16_f32 v{O+1}, v{B1+2}, v{B1+3}')
        a(f'ds_write_b64 v{vT}, {vr(O,2)}')
        a(f'v_cvt_pk_bf16_f32 v{O+2}, v{B2}, v{B2+1}\nv_cvt_pk_bf16_f32 v{O+3}, v{B2+2}, v{B2+3}')
        a(f'ds_write_b64 v{vT}, {vr(O+2,2)} offset:4096')
        if p < 4:
            for n in range(4 * p, 4 * p + 4):
                gi, j = vload[n]
                so = 's56' if j < 4 else 's57'
                vm.issue(f'buffer_load_dwordx4 {vr(vxreg(gi,j),4)}, v{vD}, s[{QV}:{QV+3}], {so} offen offset:{(j%4)*1024+gi*256}{LDA}', f'v{gi}')
    stamp(a, st, 1)
    a('s_waitcnt lgkmcnt(0)')
    KO = BLK + 64
    for s in range(8): a(f'ds_read_b128 {vr(KO+4*s,4)}, v{vRe if s%2==0 else vRo} offset:{s*1024}')
    for s in range(8):
        a(f's_waitcnt lgkmcnt({7-s})')
        vm.issue(f'buffer_store_dwordx4 {vr(KO+4*s,4)}, v{vL}, s[{WS}:{WS+3}], {"s63" if s<4 else "s3"} offen offset:{(s%4)*1024}{STK}', 'st')
    vm.wait('vs')
    SV, ZV = T0, T0 + 8
    VO = BLK + 96
    for gi in range(2):
        for j in range(8):
            src = 4 * (j // 2) + 2 * (j % 2)
            if gi == 0: a(f'v_lshlrev_b32 v{SV+j}, 16, v{rVS+src}\nv_lshlrev_b32 v{ZV+j}, 16, v{rVZ+src}')
            else: a(f'v_and_b32 v{SV+j}, 0xffff0000, v{rVS+src}\nv_and_b32 v{ZV+j}, 0xffff0000, v{rVZ+src}')
        for j in range(8): a(f'v_mul_f32 v{ZV+j}, v{ZV+j}, v{SV+j}')
        vm.wait(f'v{gi}')
        for j in range(8):
            x = vxreg(gi, j)
            for i in range(4): a(f'v_cvt_f32_i32 v{x+i}, v{x+i}')
            for i in range(4): a(f'v_fma_f32 v{x+i}, v{x+i}, v{SV+j}, -v{ZV+j}')
        for i in range(4):
            for jp in range(4):
                a(f'v_cvt_pk_bf16_f32 v{VO+16*gi+4*i+jp}, v{vxreg(gi,2*jp)+i}, v{vxreg(gi,2*jp+1)+i}')
            vm.issue(f'buffer_store_dwordx4 {vr(VO+16*gi+4*i,4)}, v{vL}, s[{WS}:{WS+3}], {"s62" if gi==0 else "s61"} offen offset:{i*1024}{STK}', 'st')
    if o.get('spin'):
        a('s_cmp_lg_u32 s2, 0\ns_cbranch_scc1 Lp_done\ns_cmp_lg_u32 s44, 0\ns_cbranch_scc1 Lp_done')
        stamp_flush(a, True, 1, WS, 's44', 0, 16)
    stamp(a, st, 2)
    if st:
        a('s_waitcnt vmcnt(0)')
        stamp(a, st, 3)
        if o.get('probe'): a('s_cmp_lg_u32 s2, 0\ns_cbranch_scc1 Lp_done\ns_cmp_lg_u32 s44, 0\ns_cbranch_scc1 Lp_done')
        stamp_flush(a, st, 12 if fine else 4, WS, 's44', 0, 16)
    a('Lp_done:\ns_endpgm')

class Sched:
    def __init__(self, n, cap=2):
        self.n = n; self.gap = [[] for _ in range(n)]; self.used = [0] * n; self.cap = cap; self.tail = [[] for _ in range(n)]
    def fixed(self, g, text, cost=1, tail=False):
        (self.tail if tail else self.gap)[g].append(text); self.used[g] += cost
    def place(self, items, start):
        g = start; out = []
        for text, cost, earliest in items:
            g = max(g, earliest)
            while self.used[g % self.n] + cost > self.cap: g += 1
            self.gap[g % self.n].append(text); self.used[g % self.n] += cost
            out.append(g)
        return out

def gen_attn(a, o):
    st = o.get('stamps')
    R = o.get('R', 8)
    AUX = o.get('kv_aux', '')
    K = f'{NAME}_kernel'
    a(f'.globl {K}\n.p2align 8\n.type {K},@function\n{K}:')
    a('s_cmp_ge_u32 s2, 256\ns_cbranch_scc1 La_done')
    stamp(a, st, 0)
    SQ, SC, SN, WS, OUT = 8, 12, 16, 20, 24
    post = []
    post += srd(a, SQ, 0, 8 << 20); post += srd(a, SC, 56, 1 << 20); post += srd(a, SN, 64, 1 << 20)
    post += srd(a, WS, 104, 16 << 20); post += srd(a, OUT, 88, 8 << 20)
    for s in post: a(s)
    vOff = 1
    vPw, vPr, vT = 5, 6, 7
    L = 8
    MF = 12
    NM = 16
    S = 32
    PO = 64
    O = 80
    QL = 144
    T0 = 240
    aQ, aR, aP = 0, 128, 224
    assert aR + 4 * R <= aP
    LP, LM, LL = 0, 32768, 33792
    sW, sK, sV, sVn, sKb, sCnt, sSecond, sT = 's28', 's29', 's30', 's31', 's32', 's33', 's34', 's35'
    a('v_lshrrev_b32 v7, 6, v0\nv_and_b32 v0, 63, v0')
    a('v_lshlrev_b32 v1, 4, v0')
    a(f'v_readfirstlane_b32 {sW}, v7')
    a('v_lshrrev_b32 v240, 4, v0\nv_and_b32 v241, 15, v0')
    a('v_lshlrev_b32 v242, 11, v240\nv_lshl_add_u32 v242, v241, 4, v242')
    a('s_and_b32 s36, s2, 7\ns_lshr_b32 s37, s2, 3')
    a(f's_lshl_b32 s38, s37, 2\ns_add_u32 s38, s38, {sW}\ns_lshl_b32 s38, s38, 13')
    a('s_lshl_b32 s39, s36, 20\ns_add_u32 s40, s39, s38')
    a(f's_lshl_b32 {sKb}, {sW}, 18\ns_add_u32 {sKb}, {sKb}, s39')
    a('s_waitcnt lgkmcnt(0)')
    vm = VM(a)
    for p in range(4):
        B = QL + 24 * p
        for n, (sd, so) in enumerate(((SQ, 's40'), (SC, 's38'), (SN, 's38'))):
            for hi in range(2):
                vm.issue(f'buffer_load_dwordx4 {vr(B+8*n+4*hi,4)}, v242, s[{sd}:{sd+3}], {so} offen offset:{p*512+hi*256}{o.get("q_aux","") if n==0 else o.get("qc_aux","")}', f'q{p}')
    a('v_add_u32 v2, 4096, v1\nv_add_u32 v3, 8192, v1\nv_add_u32 v4, 12288, v1')
    a(f's_mov_b32 {sSecond}, 0')
    for qb in range(4): a(f'v_mov_b32 v{MF+qb}, 0xff800000')
    def kvload(n, sreg):
        return lambda slot: f'buffer_load_dwordx4 {ar(aR+4*slot,4)}, v{vOff+n//4}, s[{WS}:{WS+3}], {sreg} offen offset:{(n%4)*1024}{AUX}'
    def start_stream():
        a(f's_and_b32 {sT}, s37, 15\ns_lshl_b32 {sT}, {sT}, 14\ns_add_u32 {sK}, {sKb}, {sT}')
    start_stream()
    for n in range(R - 1): vm.issue(kvload(n, sK)(n), 'kv')
    a(f's_mov_b32 s4, {SEL_E}\ns_mov_b32 s5, {SEL_O}')
    a('v_lshrrev_b32 v243, 2, v241\nv_and_b32 v244, 3, v241\nv_and_b32 v245, 7, v241')
    a('v_lshlrev_b32 v246, 2, v240\nv_xor_b32 v246, v246, v245\nv_lshl_add_u32 v246, v244, 4, v246\nv_lshlrev_b32 v246, 4, v246')
    a(f'v_lshl_add_u32 v246, v243, 10, v246\ns_lshl_b32 {sT}, {sW}, 13\nv_add_u32 v246, {sT}, v246')
    a('v_xor_b32 v247, v241, v240\nv_lshl_add_u32 v247, v240, 4, v247\nv_lshlrev_b32 v247, 4, v247\nv_xor_b32 v248, 64, v247')
    TA = S
    for p in range(4):
        B = QL + 24 * p
        vm.wait(f'q{p}')
        ql, qh, cl_, ch, sl, sh = B, B + 4, B + 8, B + 12, B + 16, B + 20
        for k in range(4):
            t = TA + 8 * (k % 2)
            for e, sel in enumerate(('s4', 's5')):
                a(f'v_perm_b32 v{t+e}, v{qh+k}, v{ql+k}, {sel}')
                a(f'v_perm_b32 v{t+2+e}, v{sl+k}, v{cl_+k}, {sel}')
                a(f'v_perm_b32 v{t+4+e}, v{ch+k}, v{sh+k}, {sel}')
            for e in range(2): a(f'v_dot2_f32_bf16 v{t+2+e}, v{t+e}, v{t+2+e}, 0 neg_hi:[0,1,0]')
            for e in range(2): a(f'v_dot2_f32_bf16 v{t+4+e}, v{t+e}, v{t+4+e}, 0')
            if k > 0:
                tp = TA + 8 * ((k - 1) % 2)
            a('s_nop 0')
            a(f'v_cvt_pk_bf16_f32 v{ql+k}, v{t+2}, v{t+3}') if False else None
            if k > 0:
                a(f'v_cvt_pk_bf16_f32 v{ql+k-1}, v{tp+2}, v{tp+3}\nv_cvt_pk_bf16_f32 v{qh+k-1}, v{tp+4}, v{tp+5}')
        t = TA + 8
        a(f'v_xor_b32 v{vT}, {p*16}, v246\ns_nop 0')
        a(f'v_cvt_pk_bf16_f32 v{ql+3}, v{t+2}, v{t+3}\nv_cvt_pk_bf16_f32 v{qh+3}, v{t+4}, v{t+5}')
        a(f'ds_write_b128 v{vT}, {vr(ql,4)}\nds_write_b128 v{vT}, {vr(qh,4)} offset:4096')
    a('s_waitcnt lgkmcnt(0)\ns_barrier')
    for s in range(8):
        for qb in range(4):
            a(f'ds_read_b128 {ar(aQ+(qb*8+s)*4,4)}, v{247 if s%2==0 else 248} offset:{qb*8192+s*1024}')
    stamp(a, st, 1)
    a('La_restart:')
    a(f's_lshl_b32 {sT}, {sW}, 12\ns_add_u32 {sT}, {sT}, {LP}\nv_add_u32 v{vPw}, {sT}, v1\nv_add_u32 v{vPr}, {LP}, v1')
    for i in range(64): a(f'v_mov_b32 v{O+i}, 0')
    for qb in range(4): a(f'v_mov_b32 v{L+qb}, 0')

    def qk_mfma(n, first_c):
        f, qb = n // 4, n % 4
        kb, s = f // 8, f % 8
        D = vr(S + kb * 16 + qb * 4, 4)
        C = D if s else first_c(qb)
        return f'v_mfma_f32_16x16x32_bf16 {D}, {ar(aR+4*(f%R),4)}, {ar(aQ+(qb*8+s)*4,4)}, {C}'
    def pv_mfma(n, f0):
        f, qb = n // 4, n % 4
        u, i = f // 4, f % 4
        D = vr(O + i * 16 + qb * 4, 4)
        return f'v_mfma_f32_16x16x32_bf16 {D}, {ar(aP+(u%2)*16+qb*4,4)}, {ar(aR+4*((f0+f)%R),4)}, {D}'
    adv_k = [f's_add_u32 {sVn}, {sK}, 0x800000', f's_add_u32 {sK}, {sK}, 16384', f's_and_b32 {sK}, {sK}, 0x3ffff', f's_or_b32 {sK}, {sK}, {sKb}']
    a(f's_waitcnt vmcnt({R-2}) lgkmcnt(0)')
    for n in range(64):
        a(qk_mfma(n, lambda qb: '0'))
        f = n // 4
        if n % 4 == 0:
            m = f - 1 + R
            a(kvload(m % 16, sK)(m % R))
            if m == 15:
                for s in adv_k: a(s)
                a(f's_mov_b32 {sV}, {sVn}')
        if n % 4 == 3: a(f's_waitcnt vmcnt({R-2})')
    assert 16 % R == 0 or True
    F0 = 16 % R
    assert 32 % R == 0 and F0 == 0
    stamp(a, st, 2)
    a('s_nop 4')
    for qb in range(4):
        x = S + qb * 4; y = S + 16 + qb * 4
        a(f'v_max3_f32 v{T0+qb}, v{x}, v{x+1}, v{MF+qb}')
        a(f'v_max3_f32 v{T0+qb}, v{x+2}, v{x+3}, v{T0+qb}')
    for qb in range(4):
        y = S + 16 + qb * 4
        a(f'v_max3_f32 v{T0+qb}, v{y}, v{y+1}, v{T0+qb}')
        a(f'v_max3_f32 v{T0+qb}, v{y+2}, v{y+3}, v{T0+qb}')
    def xreduce(op, r):
        a('s_nop 1')
        a(f'v_permlane16_swap_b32 v{r}, v{r+1}\nv_permlane16_swap_b32 v{r+2}, v{r+3}')
        a(f'{op} v{r}, v{r}, v{r+1}\n{op} v{r+2}, v{r+2}, v{r+3}')
        a('s_nop 1')
        a(f'v_permlane32_swap_b32 v{r}, v{r+2}')
        a(f'{op} v{r}, v{r}, v{r+2}')
    xreduce('v_max_f32', T0)
    a(f's_lshl_b32 {sT}, {sW}, 2\nv_add_u32 v{vT}, {sT}, v1')
    a(f'ds_write_b32 v{vT}, v{T0} offset:{LM}')
    a(f'v_and_b32 v{vT}, 0xf0, v1')
    a('s_waitcnt lgkmcnt(0)\ns_barrier')
    for qb in range(4): a(f'ds_read_b128 {vr(NM+4*qb,4)}, v{vT} offset:{LM+qb*256}')
    for qb in range(4):
        a(f's_waitcnt lgkmcnt({3-qb})')
        x = NM + 4 * qb
        a(f'v_max3_f32 v{x}, v{x}, v{x+1}, v{x+2}\nv_max_f32 v{x}, v{x}, v{x+3}\nv_sub_f32 v{x}, 0, v{x}')
        a(f'v_mov_b32 v{x+1}, v{x}\nv_mov_b32 v{x+2}, v{x}\nv_mov_b32 v{x+3}, v{x}')
        for kb in range(2):
            for r in range(4): a(f'v_add_f32 v{S+kb*16+qb*4+r}, v{x}, v{S+kb*16+qb*4+r}')

    sc = Sched(128)
    for f in range(32):
        m = f - 1 + R
        if m < 16: ld = kvload(m, sK)
        elif m < 32: ld = kvload(m - 16, sV)
        else: ld = kvload(m - 32, sK)
        sc.fixed(4 * f, ld(m % R), 2)
        sc.fixed(4 * f + 3, f's_waitcnt vmcnt({R-2})', 1, tail=True)
    def soft(kb, qb):
        x = S + kb * 16 + qb * 4
        it = [(f'v_exp_f32 v{x+r}, v{x+r}', 2) for r in range(4)]
        it += [(f'v_add_f32 v{L+qb}, v{L+qb}, v{x}', 1), (f'v_add_f32 v{L+qb}, v{L+qb}, v{x+1}', 1),
               (f'v_cvt_pk_bf16_f32 v{PO+qb*4+kb*2}, v{x}, v{x+1}', 1),
               (f'v_add_f32 v{L+qb}, v{L+qb}, v{x+2}', 1), (f'v_add_f32 v{L+qb}, v{L+qb}, v{x+3}', 1),
               (f'v_cvt_pk_bf16_f32 v{PO+qb*4+kb*2+1}, v{x+2}, v{x+3}', 1)]
        return it
    GB = o.get('gbar', 34)
    pread = lambda u, qb: f'ds_read_b128 {ar(aP+(u%2)*16+qb*4,4)}, v{vPr} offset:{u*4096+qb*1024}'
    sc.fixed(GB, 's_waitcnt lgkmcnt(0)', 1); sc.fixed(GB, 's_barrier', 1)
    rd_gaps = {0: [39, 43, 47, 51], 1: [55, 59, 63, 67], 2: [83, 87, 89, 91], 3: [99, 103, 105, 107]}
    for u in range(4):
        for qb in range(4): sc.fixed(rd_gaps[u][qb], pread(u, qb), 1)
    sc.fixed(62, 's_waitcnt lgkmcnt(2)', 1)
    sc.fixed(79, 's_waitcnt lgkmcnt(0)', 1)
    sc.fixed(95, 's_waitcnt lgkmcnt(0)', 1)
    sc.fixed(111, 's_waitcnt lgkmcnt(0)', 1)
    gk = 4 * (16 - R) + 1
    salu_items = [(s, 1, gk) for s in adv_k] + [(f's_cmp_eq_u32 {sCnt}, 1', 1, gk), (f's_cselect_b32 {sK}, {sVn}, {sK}', 1, gk)]
    gv = 4 * (32 - R) + 1
    loop_salu = [(f's_mov_b32 {sV}, {sVn}', 1, gv), (f'v_xor_b32 v{vPr}, 16384, v{vPr}', 1, 113), (f's_sub_u32 {sCnt}, {sCnt}, 1', 1, 113)]
    items = []
    for kb in range(2):
        for qb in range(4):
            e = (28 if kb == 0 else 60) + qb + 6
            items += [(t, c, e, kb, qb) for t, c in soft(kb, qb)]
    g_exp = 0; placed = []
    exps = [x for x in items if x[1] == 2]; singles = [x for x in items if x[1] == 1]
    sc.place(salu_items, gk)
    sc.place(loop_salu, gv)
    ge = sc.place([(t, c, e) for t, c, e, kb, qb in exps], 0)
    last_exp = {}
    first2 = {}
    for (t, c, e, kb, qb), g in zip(exps, ge):
        last_exp[(kb, qb)] = g
        first2.setdefault((kb, qb), []).append(g)
    sit = []
    for idx, (t, c, e, kb, qb) in enumerate(singles):
        k = idx % 6
        dep = first2[(kb, qb)][1] if k < 3 else first2[(kb, qb)][3]
        sit.append((t, c, dep + 1))
    gs = sc.place(sit, 0)
    lastcvt = {qb: gs[(4 + qb) * 6 + 5] for qb in range(4)}
    wr = [(f'ds_write_b128 v{vPw}, {vr(PO+4*qb,4)} offset:{qb*1024}', 2, lastcvt[qb] + 1) for qb in range(4)]
    gw = sc.place(wr, 0)
    sc.place([(f'v_xor_b32 v{vPw}, 16384, v{vPw}', 1, gw[-1] + 1)], 0)
    info = dict(exp=(ge[0], ge[-1]), single=(gs[0], gs[-1]), wr=gw)
    assert gw[-1] < 128 + GB, info
    assert max(gs[:24]) < 128, info
    assert max(gs) < 128 + 32, info
    soft_texts = set(t for t, c, e, kb, qb in items)
    gap_of = {}
    for (t, c, e, kb, qb), g in zip(exps, ge): gap_of[t] = g
    pre = [(g, 0, t) for (t, c, e, kb, qb), g in zip(exps, ge) if g < 128] + [(g, 1, t) for (t, c, e), g in zip(sit, gs) if g < 128]
    pre += [(g, 2, t) for (t, c, e), g in zip(wr, gw) if g < 128]
    assert all(g >= 128 for g in gw) or True
    pre.sort(key=lambda x: (x[0], x[1]))
    prev_trans = None
    for g, k, t in pre:
        a(t)
    a('s_nop 0')
    early_wr = [g < 128 for g in gw]
    a(f's_mov_b32 {sCnt}, 15')
    stamp(a, st, 3)
    a('.p2align 6\nLa_loop:')
    body = []
    for n in range(128):
        body.append(qk_mfma(n, lambda qb: vr(NM + 4 * qb, 4)) if n < 64 else pv_mfma(n - 64, 16))
        body += sc.gap[n] + sc.tail[n]
    body += [f's_cmp_lg_u32 {sCnt}, 0', 's_cbranch_scc1 La_loop']
    for t in body: a(t)
    errs = hazcheck.check(body + body, 'loop')
    stamp(a, st, 4)
    post = [(g, 0, t) for (t, c, e, kb, qb), g in zip(exps, ge) if g >= 128] + [(g, 1, t) for (t, c, e), g in zip(sit, gs) if g >= 128]
    post += [(g, 2, t) for (t, c, e), g in zip(wr, gw) if g >= 128]
    post.sort(key=lambda x: (x[0], x[1]))
    for g, k, t in post:
        a(t)
        if k == 0: a('s_nop 0')
    a('s_waitcnt lgkmcnt(0)\ns_barrier')
    for u in range(2):
        for qb in range(4): a(pread(u, qb))
    for qb in range(4): a(f'v_mov_b32 v{T0+qb}, v{L+qb}')
    xreduce('v_add_f32', T0)
    a(f's_lshl_b32 {sT}, {sW}, 2\nv_add_u32 v{vT}, {sT}, v1')
    a(f'ds_write_b32 v{vT}, v{T0} offset:{LL}')
    a('s_waitcnt lgkmcnt(5)')
    for n in range(64):
        a(pv_mfma(n, 0))
        f = n // 4
        if n % 4 == 0:
            m = f - 1 + R
            if m < 16: a(kvload(m, sK)(m % R))
        if n % 4 == 3 and f < 15:
            a(f's_waitcnt vmcnt({max(0, min(R-2, 14-f))})')
        if n == 15: a('s_waitcnt lgkmcnt(0)\ns_barrier')
        if n in (17, 18, 19, 21): a(pread(2, (17, 18, 19, 21).index(n)))
        if n == 22: a(f'ds_read_b128 {vr(T0,4)}, v1 offset:{LL}')
        if n == 31: a('s_waitcnt lgkmcnt(0)')
        if n in (33, 34, 35, 37): a(pread(3, (33, 34, 35, 37).index(n)))
        if n == 38:
            a(f'v_add_f32 v{T0}, v{T0}, v{T0+1}\nv_add_f32 v{T0+2}, v{T0+2}, v{T0+3}')
        if n == 39: a(f'v_add_f32 v{T0}, v{T0}, v{T0+2}')
        if n == 41: a(f'v_rcp_f32 v{T0+1}, v{T0}')
        if n == 42: a(f's_lshl_b32 {sT}, {sW}, 8\nv_lshrrev_b32 v{vT}, 2, v1')
        if n == 43: a(f'v_add_u32 v{vT}, {sT}, v{vT}')
        if n == 45: a(f'ds_write_b32 v{vT}, v{T0+1} offset:{LL+1024}')
        if n == 46: a(f's_mov_b32 s36, 0x4f800000\nv_lshrrev_b32 v{vT}, 4, v1')
        if n == 47: a('s_waitcnt lgkmcnt(0)')
        if n == 49: a(f'v_cmp_nle_f32 vcc, v{T0}, s36') if False else a(f'v_cmp_nge_f32 vcc, s36, v{T0}')
        if n == 50: a(f'v_and_b32 v{vT}, 0x30, v{vT}')
        if n == 51: a(f'v_add_u32 v{vT}, {sT}, v{vT}')
        if n in (53, 54, 55, 57): qb = (53, 54, 55, 57).index(n); a(f'ds_read_b128 {vr(NM+4*qb,4)}, v{vT} offset:{LL+1024+qb*64}')
    stamp(a, st, 5)
    a(f's_cmp_lg_u32 {sSecond}, 0\ns_cbranch_scc1 La_store')
    a('s_cbranch_vccnz La_fallback')
    a('La_store:')
    a('v_lshrrev_b32 v240, 4, v0\nv_and_b32 v241, 15, v0\nv_lshlrev_b32 v240, 11, v240\nv_lshl_add_u32 v240, v241, 3, v240')
    a(f's_lshl_b32 s38, s37, 15\ns_add_u32 s38, s38, s39\ns_lshl_b32 {sT}, {sW}, 7\ns_add_u32 s38, s38, {sT}')
    a('s_waitcnt lgkmcnt(0)')
    for qb in range(4):
        for r in range(4):
            t = S + 8 * (r % 2) + 16 * (qb % 2)
            for i in range(4): a(f'v_mul_f32 v{t+i}, v{O+i*16+qb*4+r}, v{NM+4*qb+r}')
            a(f'v_cvt_pk_bf16_f32 v{t+4}, v{t}, v{t+1}\nv_cvt_pk_bf16_f32 v{t+5}, v{t+2}, v{t+3}')
            a(f'buffer_store_dwordx2 {vr(t+4,2)}, v240, s[{OUT}:{OUT+3}], s38 offen offset:{r*512}{o.get("out_aux","")}')
        if qb < 3: a('s_add_u32 s38, s38, 8192')
    if o.get('spin'):
        a(f's_cmp_lg_u32 s2, 0\ns_cbranch_scc1 La_done\ns_cmp_lg_u32 {sW}, 0\ns_cbranch_scc1 La_done')
        a(f's_load_dwordx2 s[40:41], s[0:1], 104\ns_waitcnt lgkmcnt(0)\ns_add_u32 s40, s40, {STAMP_OFF}\ns_addc_u32 s41, s41, 0')
        a(f's_load_dwordx2 s[42:43], s[40:41], 0\ns_mov_b32 s46, 200000\ns_waitcnt lgkmcnt(0)')
        a('La_spin:\ns_memrealtime s[44:45]\ns_waitcnt lgkmcnt(0)\ns_sub_u32 s44, s44, s42\ns_sub_u32 s46, s46, 1\ns_cmp_eq_u32 s46, 0\ns_cbranch_scc1 La_done')
        a(f's_cmp_lt_u32 s44, {o["spin"]}\ns_cbranch_scc1 La_spin')
    if st:
        stamp(a, st, 6)
        a('s_waitcnt vmcnt(0)')
        stamp(a, st, 7)
        stamp_flush(a, st and not o.get('fine'), 8, WS, sW, 4, 240)
        if o.get('probe'):
            i, j = [int(x) for x in str(o['probe']).split(':')]
            a(f's_cmp_lg_u32 s2, 0\ns_cbranch_scc1 La_done\ns_cmp_lg_u32 {sW}, 0\ns_cbranch_scc1 La_done')
            a(f's_load_dwordx2 s[40:41], s[0:1], 104\ns_waitcnt lgkmcnt(0)\ns_add_u32 s40, s40, {STAMP_OFF}\ns_addc_u32 s41, s41, 0')
            a(f's_load_dword s42, s[40:41], 0')
            for k, r in ((i, 's47'), (j, 's48')):
                if k < 16: a(f's_load_dword {r}, s[40:41], {8*k}')
                else: a(f's_mov_b32 {r}, s{64+2*(k-16)}')
            a('s_mov_b32 s46, 400000\ns_waitcnt lgkmcnt(0)\ns_sub_u32 s47, s48, s47\ns_lshl_b32 s47, s47, 2\ns_add_u32 s47, s47, 10000')
            a('La_spin:\ns_memrealtime s[44:45]\ns_waitcnt lgkmcnt(0)\ns_sub_u32 s44, s44, s42\ns_sub_u32 s46, s46, 1\ns_cmp_eq_u32 s46, 0\ns_cbranch_scc1 La_done')
            a('s_cmp_lt_u32 s44, s47\ns_cbranch_scc1 La_spin')
    a('La_done:\ns_endpgm')
    a('La_fallback:')
    a(f's_mov_b32 {sSecond}, 1\ns_mov_b32 {sK}, {sKb}\ns_mov_b32 {sCnt}, 32')
    a('s_waitcnt vmcnt(0) lgkmcnt(0)')
    a('La_fb_loop:')
    for s in range(8): a(kvload(s, sK)(s))
    a('s_waitcnt vmcnt(0)')
    for s in range(8):
        for qb in range(4):
            D = vr(S + qb * 4, 4)
            a(f'v_mfma_f32_16x16x32_bf16 {D}, {ar(aR+4*s,4)}, {ar(aQ+(qb*8+s)*4,4)}, {D if s else "0"}')
    a(f's_add_u32 {sK}, {sK}, 8192\ns_sub_u32 {sCnt}, {sCnt}, 1\ns_nop 7')
    for qb in range(4):
        x = S + qb * 4
        a(f'v_max3_f32 v{MF+qb}, v{x}, v{x+1}, v{MF+qb}\nv_max3_f32 v{MF+qb}, v{x+2}, v{x+3}, v{MF+qb}')
    a(f's_cmp_lg_u32 {sCnt}, 0\ns_cbranch_scc1 La_fb_loop')
    start_stream()
    for n in range(R - 1): a(kvload(n, sK)(n))
    a('s_barrier\ns_branch La_restart')
    return errs

HEADER = open('cdna_kernels/' + NAME + '.s.ref').read().split('; Override launch')[0]

def gen(o):
    if o.get('probe'):
        o['stamps'] = 1; o['fine'] = 1
    a = Asm()
    a(HEADER.rstrip('\n'))
    a('; @launch kernel=prep_kernel grid=(256,1,1) block=(256,1,1) lds=32768')
    a(f'; @launch kernel={NAME}_kernel grid=(256,1,1) block=(256,1,1) lds=35840')
    a('.amdgcn_target "amdgcn-amd-amdhsa--gfx950"\n.text')
    gen_prep(a, o)
    errs = gen_attn(a, o)
    errs += hazcheck.check(a.lines, 'all')
    a(kernel_desc('prep_kernel', 256, 96, 256))
    a(kernel_desc(f'{NAME}_kernel', 512, 96, 256))
    return a.text(), errs

if __name__ == '__main__':
    o = {}
    outp = None
    for x in sys.argv[1:]:
        if '=' in x:
            k, v = x.split('=', 1)
            try: v = int(v)
            except ValueError: v = v.replace('_', ' ')
            o[k] = v
        else: outp = x
    txt, errs = gen(o)
    for e in errs: print(e)
    open(outp or 'v1.s', 'w').write(txt)
```

```python
import sys
from asmlib import *
import hazcheck

NAME = 'standalone__kv_cache_quant_pre_rope_vs_post_rope__prompt'
CSCALE = 0x3db8aa3b
SEL_E = 0x05040100
SEL_O = 0x07060302
STAMP_OFF = 128 << 20

class VM:
    def __init__(self, a): self.a = a; self.ops = []
    def issue(self, text, tag=None):
        self.a(text); self.ops.append(tag)
    def wait(self, *tags):
        last = max(i for i, t in enumerate(self.ops) if t in tags)
        n = len(self.ops) - 1 - last
        self.a(f's_waitcnt vmcnt({min(n,63)})')

class Sched:
    def __init__(self, n, cap=2):
        self.n = n; self.gap = [[] for _ in range(n)]; self.used = [0] * n; self.cap = cap; self.tail = [[] for _ in range(n)]
    def fixed(self, g, text, cost=1, tail=False):
        (self.tail if tail else self.gap)[g].append(text); self.used[g] += cost
    def place(self, items, start):
        g = start; out = []
        for text, cost, earliest in items:
            g = max(g, earliest)
            while self.used[g % self.n] + cost > self.cap: g += 1
            self.gap[g % self.n].append(text); self.used[g % self.n] += cost
            out.append(g)
        return out

def gen_kernel(a, o):
    st = o.get('stamps')
    R = o.get('R', 16)
    AUX = o.get('kv_aux', ' sc1')
    STK = o.get('prep_store', ' sc1')
    LDA = o.get('prep_load', '')
    QSPLIT = o.get('qsplit', 8)
    SYNC = 'epoch'
    H = o.get('H', 2)
    def sreg(i): return (96 + 2 * i) if i < 3 else (8 + 2 * (i - 3))
    def stamp(i):
        if st: a(f's_memrealtime s[{sreg(i)}:{sreg(i)+1}]')
    K = f'{NAME}_kernel'
    a(f'.globl {K}\n.p2align 8\n.type {K},@function\n{K}:')
    a('s_cmp_ge_u32 s2, 256\ns_cbranch_scc1 La_done')
    stamp(0)
    QK, KS, KZ, QV, VS, VZ, KC, KN, WS, SQ, SC, SN, OUT, DBG = range(8, 64, 4)
    post = []
    for base, off, nb in ((QK, 8, 16 << 20), (KS, 16, 128 << 10), (KZ, 24, 128 << 10), (KC, 72, 1 << 20), (KN, 80, 1 << 20),
                          (QV, 32, 16 << 20), (VS, 40, 128 << 10), (VZ, 48, 128 << 10), (WS, 104, 17 << 20),
                          (SQ, 0, 8 << 20), (SC, 56, 1 << 20), (SN, 64, 1 << 20), (OUT, 88, 8 << 20), (DBG, 96, 256)):
        a(f's_load_dwordx2 s[{base}:{base+1}], s[0:1], {off}')
        post += [f's_mov_b32 s{base+2}, {nb}', f's_mov_b32 s{base+3}, 0x00020000']
    vA, vB, vC, vD, vE, vL, vSel, vW0, vRe, vRo, vT = 1, 2, 3, 4, 5, 6, 7, 8, 9, 10, 11
    sW = 's64'
    a('v_lshrrev_b32 v11, 6, v0\nv_and_b32 v0, 63, v0')
    a('v_lshrrev_b32 v12, 5, v0\nv_and_b32 v13, 31, v0')
    a(f'v_readfirstlane_b32 {sW}, v11')
    a('v_lshlrev_b32 v1, 13, v12\nv_lshl_add_u32 v1, v13, 4, v1')
    a('v_lshlrev_b32 v2, 12, v12\nv_lshl_add_u32 v2, v13, 3, v2')
    a('v_lshlrev_b32 v3, 6, v12')
    sT_, sH_, sB_, sRow = 's65', 's66', 's67', 's68'
    a(f's_and_b32 s65, s2, 7\ns_lshr_b32 s66, s2, 3\ns_and_b32 s67, s66, 7\ns_lshl_b32 s65, s65, 3\ns_add_u32 s65, s65, s67')
    a(f's_lshr_b32 s3, s66, 3\ns_lshl_b32 s66, s3, 1\ns_lshr_b32 s67, {sW}, 1\ns_add_u32 s66, s66, s67')
    a(f's_and_b32 s67, {sW}, 1')
    a('s_lshl_b32 s68, s66, 11\ns_lshl_b32 s69, s65, 5\ns_add_u32 s68, s68, s69')
    a('s_lshl_b32 s70, s67, 4\ns_add_u32 s71, s68, s70')
    a('s_lshl_b32 s72, s71, 10\ns_add_u32 s73, s72, 4096')
    a('s_add_u32 s74, s69, s70\ns_lshl_b32 s74, s74, 9')
    a('s_lshl_b32 s75, s71, 3')
    for s in post: a(s)
    a('s_waitcnt lgkmcnt(0)')
    vm = VM(a)
    BLK = 128
    rKS, rKZ, rVS, rVZ = 64, 80, 96, 112
    def kloads(p):
        B = BLK + 16 * p
        so = 's72' if p < 4 else 's73'
        vm.issue(f'buffer_load_dwordx4 {vr(B,4)}, v{vA}, s[{QK}:{QK+3}], {so} offen offset:{(p%4)*1024}{LDA}', f'k{p}')
        vm.issue(f'buffer_load_dwordx4 {vr(B+4,4)}, v{vA}, s[{QK}:{QK+3}], {so} offen offset:{(p%4)*1024+512}{LDA}', f'k{p}')
        vm.issue(f'buffer_load_dwordx2 {vr(B+8,2)}, v{vB}, s[{KC}:{KC+3}], s74 offen offset:{p*512}', f'k{p}')
        vm.issue(f'buffer_load_dwordx2 {vr(B+10,2)}, v{vB}, s[{KC}:{KC+3}], s74 offen offset:{p*512+256}', f'k{p}')
        vm.issue(f'buffer_load_dwordx2 {vr(B+12,2)}, v{vB}, s[{KN}:{KN+3}], s74 offen offset:{p*512}', f'k{p}')
        vm.issue(f'buffer_load_dwordx2 {vr(B+14,2)}, v{vB}, s[{KN}:{KN+3}], s74 offen offset:{p*512+256}', f'k{p}')
    kloads(0)
    for i in range(4): vm.issue(f'buffer_load_dwordx4 {vr(rKS+4*i,4)}, v{vC}, s[{KS}:{KS+3}], s75 offen offset:{16*i}', 'k0')
    for i in range(4): vm.issue(f'buffer_load_dwordx4 {vr(rKZ+4*i,4)}, v{vC}, s[{KZ}:{KZ+3}], s75 offen offset:{16*i}', 'k0')
    for p in range(1, 8): kloads(p)
    a('v_lshrrev_b32 v14, 4, v0\nv_and_b32 v15, 15, v0')
    a('v_lshlrev_b32 v5, 5, v14')
    a('s_lshl_b32 s78, s68, 3\ns_lshl_b32 s79, s67, 2\ns_add_u32 s78, s78, s79')
    for i in range(4): vm.issue(f'buffer_load_dwordx4 {vr(rVS+4*i,4)}, v{vE}, s[{VS}:{VS+3}], s78 offen offset:{(i>>1)*128+(i&1)*16}', 'vs')
    for i in range(3): vm.issue(f'buffer_load_dwordx4 {vr(rVZ+4*i,4)}, v{vE}, s[{VZ}:{VZ+3}], s78 offen offset:{(i>>1)*128+(i&1)*16}', 'vs')
    a('v_lshlrev_b32 v6, 4, v0')
    a('v_lshlrev_b32 v4, 12, v14\nv_lshl_add_u32 v4, v15, 4, v4')
    a('s_lshl_b32 s76, s68, 10\ns_lshl_b32 s77, s67, 9\ns_add_u32 s76, s76, s77\ns_add_u32 s77, s76, 16384')
    a('v_lshrrev_b32 v16, 4, v13')
    a('v_mul_u32_u24 v16, 0x0202, v16\nv_lshlrev_b32 v16, 16, v16\nv_add_u32 v7, 0x01000c0c, v16')
    a('v_lshrrev_b32 v16, 3, v13\nv_bfe_u32 v17, v13, 1, 2\nv_and_b32 v18, 1, v13')
    a('v_lshlrev_b32 v8, 10, v16\nv_lshl_add_u32 v8, v17, 8, v8\nv_lshl_add_u32 v8, v12, 7, v8\nv_lshl_add_u32 v8, v18, 3, v8')
    a('v_and_b32 v16, 1, v16\nv_lshl_add_u32 v16, v16, 2, v17\nv_lshl_add_u32 v8, v16, 4, v8')
    a(f's_lshl_b32 s79, {sW}, 13\nv_add_u32 v8, s79, v8')
    a('v_xor_b32 v16, v15, v14\nv_lshl_add_u32 v16, v14, 4, v16\nv_lshlrev_b32 v12, 4, v16\nv_xor_b32 v13, 64, v12')
    a('v_add_u32 v9, s79, v12\nv_add_u32 v10, s79, v13')
    a('s_lshr_b32 s80, s65, 2\ns_and_b32 s81, s65, 3')
    a('s_lshl_b32 s82, s66, 20\ns_lshl_b32 s80, s80, 14\ns_add_u32 s82, s82, s80')
    a('s_lshl_b32 s83, s81, 18\ns_add_u32 s83, s83, s82\ns_lshl_b32 s80, s67, 13\ns_add_u32 s83, s83, s80')
    a('s_add_u32 s84, s83, 4096')
    a('s_lshl_b32 s80, s67, 19\ns_add_u32 s82, s82, s80\ns_lshl_b32 s80, s81, 12\ns_add_u32 s82, s82, s80\ns_add_u32 s82, s82, 0x800000')
    a('s_add_u32 s81, s82, 0x40000')
    a(f's_mov_b32 s4, {CSCALE}\ns_mov_b32 s5, {SEL_E}\ns_mov_b32 s6, {SEL_O}')
    if H == 1: a('s_and_b32 s86, s2, 7\ns_lshr_b32 s87, s2, 3')
    elif H == 2: a('s_and_b32 s86, s2, 6\ns_bfe_u32 s87, s2, 0x10003\ns_add_u32 s86, s86, s87\ns_and_b32 s87, s2, 1\ns_lshl_b32 s87, s87, 4\ns_lshr_b32 s85, s2, 4\ns_add_u32 s87, s87, s85')
    elif H == 4: a('s_and_b32 s86, s2, 4\ns_bfe_u32 s87, s2, 0x20003\ns_add_u32 s86, s86, s87\ns_and_b32 s87, s2, 3\ns_lshl_b32 s87, s87, 3\ns_lshr_b32 s85, s2, 5\ns_add_u32 s87, s87, s85')
    a(f's_lshl_b32 s88, s87, 2\ns_add_u32 s88, s88, {sW}\ns_lshl_b32 s88, s88, 13')
    a('s_lshl_b32 s89, s86, 20\ns_add_u32 s90, s89, s88')
    if SYNC == 'epoch':
        a(f's_add_u32 s92, s{WS}, {16<<20}\ns_addc_u32 s93, s{WS+1}, 0\ns_load_dword s91, s[92:93], 4096')
    vm.issue(f'buffer_load_dwordx4 {vr(rVZ+12,4)}, v{vE}, s[{VZ}:{VZ+3}], s78 offen offset:144', 'vs')
    T0 = 16
    qlist = []
    for p in range(4):
        for n, (sd, so) in enumerate(((SQ, 's90'), (SC, 's88'), (SN, 's88'))):
            for hi in range(2):
                qlist.append((p, n, hi, sd, so))
    QR = {(p, n, hi): BLK + 4 * i for i, (p, n, hi, sd, so) in enumerate(qlist)}
    vQ = 3
    a('v_lshlrev_b32 v3, 11, v14\nv_lshl_add_u32 v3, v15, 4, v3')
    def qissue(lo, hi_):
        for (p, n, hi, sd, so) in qlist[lo:hi_]:
            vm.issue(f'buffer_load_dwordx4 {vr(QR[(p,n,hi)],4)}, v{vQ}, s[{sd}:{sd+3}], {so} offen offset:{p*512+hi*256}{o.get("q_aux","") if n==0 else ""}', f'q{p}')
    def vxreg(gi, j): return (BLK + 96 + 4 * j) if gi == 0 else (64 + 4 * j)
    def vissue(gi):
        for j in range(8):
            so = 's76' if j < 4 else 's77'
            vm.issue(f'buffer_load_dwordx4 {vr(vxreg(gi,j),4)}, v{vD}, s[{QV}:{QV+3}], {so} offen offset:{(j%4)*1024+gi*256}{LDA}', f'v{gi}')
    for p in range(8):
        B = BLK + 16 * p
        vm.wait(f'k{p}')
        sl, sh, zl, zh = T0, T0 + 1, T0 + 2, T0 + 3
        a(f'v_perm_b32 v{sl}, v{rKS+2*p}, v{rKS+2*p}, v{vSel}\nv_perm_b32 v{sh}, v{rKS+2*p+1}, v{rKS+2*p+1}, v{vSel}')
        a(f'v_perm_b32 v{zl}, v{rKZ+2*p}, v{rKZ+2*p}, v{vSel}\nv_perm_b32 v{zh}, v{rKZ+2*p+1}, v{rKZ+2*p+1}, v{vSel}')
        a(f'v_mul_f32 v{sl}, s4, v{sl}\nv_mul_f32 v{sh}, s4, v{sh}\nv_mul_f32 v{zl}, v{zl}, v{sl}\nv_mul_f32 v{zh}, v{zh}, v{sh}')
        for e in range(8): a(f'v_cvt_f32_i32 v{B+e}, v{B+e}')
        for e in range(4): a(f'v_fma_f32 v{B+e}, v{B+e}, v{sl}, -v{zl}')
        for e in range(4): a(f'v_fma_f32 v{B+4+e}, v{B+4+e}, v{sh}, -v{zh}')
        for e in range(4): a(f'v_cvt_pk_bf16_f32 v{B+e}, v{B+e}, v{B+4+e}')
        B1, B2 = T0 + 4, T0 + 8
        for e in range(4):
            sel = 's5' if e % 2 == 0 else 's6'
            a(f'v_perm_b32 v{B1+e}, v{B+12+e//2}, v{B+8+e//2}, {sel}')
            a(f'v_perm_b32 v{B2+e}, v{B+10+e//2}, v{B+14+e//2}, {sel}')
        for e in range(4): a(f'v_dot2_f32_bf16 v{B1+e}, v{B+e}, v{B1+e}, 0 neg_hi:[0,1,0]')
        for e in range(4): a(f'v_dot2_f32_bf16 v{B2+e}, v{B+e}, v{B2+e}, 0')
        if p < 6: qissue(4 * p, 4 * p + 4)
        O_ = T0 + 12
        a(f'v_xor_b32 v{vT}, {p*16}, v{vW0}')
        a(f'v_cvt_pk_bf16_f32 v{O_}, v{B1}, v{B1+1}\nv_cvt_pk_bf16_f32 v{O_+1}, v{B1+2}, v{B1+3}')
        a(f'ds_write_b64 v{vT}, {vr(O_,2)}')
        a(f'v_cvt_pk_bf16_f32 v{O_+2}, v{B2}, v{B2+1}\nv_cvt_pk_bf16_f32 v{O_+3}, v{B2+2}, v{B2+3}')
        a(f'ds_write_b64 v{vT}, {vr(O_+2,2)} offset:4096')
    stamp(1)
    a('s_waitcnt lgkmcnt(0)')
    KO = 32
    for s in range(8): a(f'ds_read_b128 {vr(KO+4*s,4)}, v{vRe if s%2==0 else vRo} offset:{s*1024}')
    VEARLY = o.get('vearly', 1)
    if VEARLY: vissue(0)
    for s in range(8):
        a(f's_waitcnt lgkmcnt({7-s})')
        vm.issue(f'buffer_store_dwordx4 {vr(KO+4*s,4)}, v{vL}, s[{WS}:{WS+3}], {"s83" if s<4 else "s84"} offen offset:{(s%4)*1024}{STK}', 'kst')
    if not VEARLY: vissue(0)
    vissue(1)
    vOff = 1
    vPw, vPr = 5, 7
    vT = 11
    L, MF, NM, S, PO, O = 96, 100, 16, 32, 104, 120
    T0 = 184
    aQ, aR, aP = 0, 128, 224
    assert aR + 4 * R <= aP
    LP, LM, LL = 0, 32768, 33792
    FB = 16 << 20
    sK, sV, sVn, sKb, sCnt, sSecond, sT = 's65', 's66', 's67', 's68', 's69', 's70', 's71'
    a('v_lshrrev_b32 v16, 2, v15\nv_and_b32 v17, 3, v15\nv_and_b32 v18, 7, v15')
    a('v_lshlrev_b32 v8, 2, v14\nv_xor_b32 v8, v8, v18\nv_lshl_add_u32 v8, v17, 4, v8\nv_lshlrev_b32 v8, 4, v8')
    a('v_lshl_add_u32 v8, v16, 10, v8\nv_add_u32 v8, s79, v8')
    a('v_mov_b32 v1, v6\nv_add_u32 v2, 4096, v6\nv_add_u32 v3, 8192, v6\nv_add_u32 v4, 12288, v6')
    a('s_mul_i32 s91, s91, 0x9E3779B1\ns_add_u32 s91, s91, 0x7F4A7C15')
    a(f's_lshl_b32 s72, s3, 9\ns_lshl_b32 s73, s65, 2\ns_add_u32 s72, s72, s73\ns_add_u32 s72, s72, {FB}')
    a(f's_lshl_b32 s73, s86, 8\ns_add_u32 s73, s73, {FB}\nv_lshlrev_b32 v9, 8, v0\nv_mov_b32 v10, s91\nv_lshlrev_b32 v5, 2, v0')
    a(f's_lshl_b32 {sKb}, {sW}, 18\ns_add_u32 {sKb}, {sKb}, s89')
    a(f's_mov_b32 {sSecond}, 0')
    SV, ZV = 16, 32
    for gi in range(2):
        for j in range(8):
            src = 4 * (j // 2) + 2 * (j % 2)
            if gi == 0: a(f'v_lshlrev_b32 v{SV+j}, 16, v{rVS+src}\nv_lshlrev_b32 v{ZV+j}, 16, v{rVZ+src}')
            else: a(f'v_and_b32 v{SV+8+j}, 0xffff0000, v{rVS+src}\nv_and_b32 v{ZV+8+j}, 0xffff0000, v{rVZ+src}')
    for j in range(16): a(f'v_mul_f32 v{ZV+j}, v{ZV+j}, v{SV+j}')
    for qb in range(4): a(f'v_mov_b32 v{MF+qb}, 0xff800000')
    def kvload(n, sreg_):
        return lambda slot: f'buffer_load_dwordx4 {ar(aR+4*slot,4)}, v{vOff+n//4}, s[{WS}:{WS+3}], {sreg_} offen offset:{(n%4)*1024}{AUX}'
    def start_stream():
        if o.get('rotx', 1): a(f's_and_b32 s85, s2, 7\ns_lshl_b32 s85, s85, 1')
        else: a('s_mov_b32 s85, 0')
        a(f's_lshl_b32 {sT}, s85, 14\ns_add_u32 {sK}, {sKb}, {sT}')
    def publish(off, lbl):
        a(f's_cmp_lg_u32 {sW}, 0\ns_cbranch_scc1 {lbl}')
        a('s_mov_b64 exec, 3')
        a(f'buffer_store_dword v10, v9, s[{WS}:{WS+3}], s72 offen offset:{off} sc1')
        a(f's_mov_b64 exec, -1\n{lbl}:')
    start_stream()
    TA = 48
    for p in range(4):
        vm.wait(f'q{p}')
        ql, qh, cl_, ch, sl, sh = [QR[(p, n, hi)] for n in range(3) for hi in range(2)]
        for k in range(4):
            t = TA + 8 * (k % 2)
            for e, sel in enumerate(('s5', 's6')):
                a(f'v_perm_b32 v{t+e}, v{qh+k}, v{ql+k}, {sel}')
                a(f'v_perm_b32 v{t+2+e}, v{sl+k}, v{cl_+k}, {sel}')
                a(f'v_perm_b32 v{t+4+e}, v{ch+k}, v{sh+k}, {sel}')
            if k > 0:
                tp = TA + 8 * ((k - 1) % 2)
                a(f'v_cvt_pk_bf16_f32 v{ql+k-1}, v{tp+2}, v{tp+3}\nv_cvt_pk_bf16_f32 v{qh+k-1}, v{tp+4}, v{tp+5}')
            for e in range(2): a(f'v_dot2_f32_bf16 v{t+2+e}, v{t+e}, v{t+2+e}, 0 neg_hi:[0,1,0]')
            for e in range(2): a(f'v_dot2_f32_bf16 v{t+4+e}, v{t+e}, v{t+4+e}, 0')
        t = TA + 8
        a(f'v_xor_b32 v{vT}, {p*16}, v8\ns_nop 1')
        a(f'v_cvt_pk_bf16_f32 v{ql+3}, v{t+2}, v{t+3}\nv_cvt_pk_bf16_f32 v{qh+3}, v{t+4}, v{t+5}')
        a(f'ds_write_b128 v{vT}, {vr(ql,4)}\nds_write_b128 v{vT}, {vr(qh,4)} offset:4096')
    stamp(2)
    vm.wait('kst')
    a('s_waitcnt lgkmcnt(0)\ns_barrier')
    publish(0, 'La_pubk')
    stamp(3)
    for s in range(8):
        for qb in range(4):
            a(f'ds_read_b128 {ar(aQ+(qb*8+s)*4,4)}, v{12 if s%2==0 else 13} offset:{qb*8192+s*1024}')
    VO = 192
    def vconv(gi):
        for j in range(8):
            x = vxreg(gi, j)
            for i in range(4): a(f'v_cvt_f32_i32 v{x+i}, v{x+i}')
            for i in range(4): a(f'v_fma_f32 v{x+i}, v{x+i}, v{SV+8*gi+j}, -v{ZV+8*gi+j}')
        for i in range(4):
            for jp in range(4):
                a(f'v_cvt_pk_bf16_f32 v{VO+16*gi+4*i+jp}, v{vxreg(gi,2*jp)+i}, v{vxreg(gi,2*jp+1)+i}')
    def zero_acc():
        for i in range(64): a(f'v_mov_b32 v{O+i}, 0')
        for qb in range(4): a(f'v_mov_b32 v{L+qb}, 0')
    zero_acc()
    vm.wait('v0')
    vconv(0)
    a('s_waitcnt vmcnt(0)')
    stamp(4)
    pollk = f'buffer_load_dword v6, v5, s[{WS}:{WS+3}], s73 offen sc1'
    a(pollk)
    vconv(1)
    a('s_lshl_b32 s74, s85, 2\ns_mov_b64 s[76:77], 0xff\ns_lshl_b64 s[76:77], s[76:77], s74')
    if o.get('nofine'): a('s_mov_b64 s[76:77], -1')
    a(f's_mov_b32 {sCnt}, 0x100000')
    a('La_pollk:\ns_waitcnt vmcnt(0)\nv_cmp_ne_u32 vcc, s91, v6')
    a(f's_sub_u32 {sCnt}, {sCnt}, 1\ns_cbranch_scc1 La_readyk\ns_and_b64 s[74:75], vcc, s[76:77]\ns_cbranch_scc0 La_readyk\ns_sleep 1')
    a(pollk)
    a('s_branch La_pollk\nLa_readyk:')
    stamp(5)
    def vstores(gis):
        for gi in gis:
            for i in range(4):
                a(f'buffer_store_dwordx4 {vr(VO+16*gi+4*i,4)}, v1, s[{WS}:{WS+3}], {"s82" if gi==0 else "s81"} offen offset:{i*1024}{STK}')
    if o.get('wvar', 1):
        vstores((0, 1))
        for n in range(R - 1): a(kvload(n, sK)(n))
        a(f's_waitcnt vmcnt({R-1})\ns_barrier')
        publish(2048, 'La_pubv')
        NVS = 0
    else:
        for n in range(R - 1): a(kvload(n, sK)(n))
        vstores((0, 1))
        NVS = 8
    a('s_branch La_qk0')
    a('La_restart:')
    zero_acc()
    for i in range(NVS): a(f'buffer_load_dword v6, v5, s[{WS}:{WS+3}], s73 offen sc1')
    a('La_qk0:')

    def qk_mfma(n, first_c):
        f, qb = n // 4, n % 4
        kb, s = f // 8, f % 8
        D = vr(S + kb * 16 + qb * 4, 4)
        C = D if s else first_c(qb)
        return f'v_mfma_f32_16x16x32_bf16 {D}, {ar(aR+4*(f%R),4)}, {ar(aQ+(qb*8+s)*4,4)}, {C}'
    def pv_mfma(n, f0):
        f, qb = n // 4, n % 4
        u, i = f // 4, f % 4
        D = vr(O + i * 16 + qb * 4, 4)
        return f'v_mfma_f32_16x16x32_bf16 {D}, {ar(aP+(u%2)*16+qb*4,4)}, {ar(aR+4*((f0+f)%R),4)}, {D}'
    adv_k = [f's_add_u32 {sVn}, {sK}, 0x800000', f's_add_u32 {sK}, {sK}, 16384', f's_and_b32 {sK}, {sK}, 0x3ffff', f's_or_b32 {sK}, {sK}, {sKb}']
    a(f's_waitcnt vmcnt({R-2+NVS}) lgkmcnt(0)')
    stamp(6)
    for n in range(64):
        a(qk_mfma(n, lambda qb: '0'))
        f = n // 4
        if n % 4 == 0:
            m = f - 1 + R
            a(kvload(m % 16, sK)(m % R))
            if m == 15:
                for s in adv_k: a(s)
                a(f's_mov_b32 {sV}, {sVn}')
        if n % 4 == 3: a(f's_waitcnt vmcnt({R-2 + (NVS if f + 1 < R - 1 else 0)})')
    assert 32 % R == 0 and 16 % R == 0
    a('s_nop 4')
    for qb in range(4):
        x = S + qb * 4
        a(f'v_max3_f32 v{T0+qb}, v{x}, v{x+1}, v{MF+qb}')
        a(f'v_max3_f32 v{T0+qb}, v{x+2}, v{x+3}, v{T0+qb}')
    for qb in range(4):
        y = S + 16 + qb * 4
        a(f'v_max3_f32 v{T0+qb}, v{y}, v{y+1}, v{T0+qb}')
        a(f'v_max3_f32 v{T0+qb}, v{y+2}, v{y+3}, v{T0+qb}')
    def xreduce(op, r):
        a('s_nop 1')
        a(f'v_permlane16_swap_b32 v{r}, v{r+1}\nv_permlane16_swap_b32 v{r+2}, v{r+3}')
        a(f'{op} v{r}, v{r}, v{r+1}\n{op} v{r+2}, v{r+2}, v{r+3}')
        a('s_nop 1')
        a(f'v_permlane32_swap_b32 v{r}, v{r+2}')
        a(f'{op} v{r}, v{r}, v{r+2}')
    xreduce('v_max_f32', T0)
    a(f's_lshl_b32 {sT}, {sW}, 2\nv_add_u32 v{vT}, {sT}, v1')
    a(f'ds_write_b32 v{vT}, v{T0} offset:{LM}')
    a(f'v_and_b32 v{vT}, 0xf0, v1')
    a('s_waitcnt lgkmcnt(0)\ns_barrier')
    if not o.get('wvar', 1): publish(2048, 'La_pubv')
    for qb in range(4): a(f'ds_read_b128 {vr(NM+4*qb,4)}, v{vT} offset:{LM+qb*256}')
    for qb in range(4):
        a(f's_waitcnt lgkmcnt({3-qb})')
        x = NM + 4 * qb
        a(f'v_max3_f32 v{x}, v{x}, v{x+1}, v{x+2}\nv_max_f32 v{x}, v{x}, v{x+3}\nv_sub_f32 v{x}, 0, v{x}')
        a(f'v_mov_b32 v{x+1}, v{x}\nv_mov_b32 v{x+2}, v{x}\nv_mov_b32 v{x+3}, v{x}')
        for kb in range(2):
            for r in range(4): a(f'v_add_f32 v{S+kb*16+qb*4+r}, v{x}, v{S+kb*16+qb*4+r}')

    sc = Sched(128)
    for f in range(32):
        m = f - 1 + R
        if m < 16: ld = kvload(m, sK)
        elif m < 32: ld = kvload(m - 16, sV)
        else: ld = kvload(m - 32, sK)
        sc.fixed(4 * f, ld(m % R), 2)
        sc.fixed(4 * f + 3, f's_waitcnt vmcnt({R-2})', 1, tail=True)
    def soft(kb, qb):
        x = S + kb * 16 + qb * 4
        it = [(f'v_exp_f32 v{x+r}, v{x+r}', 2) for r in range(4)]
        it += [(f'v_add_f32 v{L+qb}, v{L+qb}, v{x}', 1), (f'v_add_f32 v{L+qb}, v{L+qb}, v{x+1}', 1),
               (f'v_cvt_pk_bf16_f32 v{PO+qb*4+kb*2}, v{x}, v{x+1}', 1),
               (f'v_add_f32 v{L+qb}, v{L+qb}, v{x+2}', 1), (f'v_add_f32 v{L+qb}, v{L+qb}, v{x+3}', 1),
               (f'v_cvt_pk_bf16_f32 v{PO+qb*4+kb*2+1}, v{x+2}, v{x+3}', 1)]
        return it
    GB = o.get('gbar', 34)
    pread = lambda u, qb: f'ds_read_b128 {ar(aP+(u%2)*16+qb*4,4)}, v{vPr} offset:{u*4096+qb*1024}'
    sc.fixed(GB, 's_waitcnt lgkmcnt(0)', 1); sc.fixed(GB, 's_barrier', 1)
    rd_gaps = {0: [39, 43, 47, 51], 1: [55, 59, 63, 67], 2: [83, 87, 89, 91], 3: [99, 103, 105, 107]}
    for u in range(4):
        for qb in range(4): sc.fixed(rd_gaps[u][qb], pread(u, qb), 1)
    sc.fixed(62, 's_waitcnt lgkmcnt(2)', 1)
    sc.fixed(79, 's_waitcnt lgkmcnt(0)', 1)
    sc.fixed(95, 's_waitcnt lgkmcnt(0)', 1)
    sc.fixed(111, 's_waitcnt lgkmcnt(0)', 1)
    gk = 4 * (16 - R) + 1
    gkp = max(gk, 25)
    salu_items = [(s, 1, gkp) for s in adv_k] + [(f's_cmp_eq_u32 {sCnt}, 1', 1, gkp), (f's_cselect_b32 {sK}, {sVn}, {sK}', 1, gkp)]
    gv = 4 * (32 - R) + 1
    loop_salu = [(f's_mov_b32 {sV}, {sVn}', 1, gv), (f'v_xor_b32 v{vPr}, 16384, v{vPr}', 1, 113), (f's_sub_u32 {sCnt}, {sCnt}, 1', 1, 113)]
    items = []
    for kb in range(2):
        for qb in range(4):
            e = (28 if kb == 0 else 60) + qb + 6
            items += [(t, c, e, kb, qb) for t, c in soft(kb, qb)]
    exps = [x for x in items if x[1] == 2]; singles = [x for x in items if x[1] == 1]
    gsal = sc.place(salu_items, gkp)
    assert gsal[-1] < 4 * (33 - R)
    sc.place(loop_salu, gv)
    ge = sc.place([(t, c, e) for t, c, e, kb, qb in exps], 0)
    first2 = {}
    for (t, c, e, kb, qb), g in zip(exps, ge): first2.setdefault((kb, qb), []).append(g)
    sit = []
    for idx, (t, c, e, kb, qb) in enumerate(singles):
        k = idx % 6
        dep = first2[(kb, qb)][1] if k < 3 else first2[(kb, qb)][3]
        sit.append((t, c, dep + 1))
    gs = sc.place(sit, 0)
    lastcvt = {qb: gs[(4 + qb) * 6 + 5] for qb in range(4)}
    wr = [(f'ds_write_b128 v{vPw}, {vr(PO+4*qb,4)} offset:{qb*1024}', 2, lastcvt[qb] + 1) for qb in range(4)]
    gw = sc.place(wr, 0)
    sc.place([(f'v_xor_b32 v{vPw}, 16384, v{vPw}', 1, gw[-1] + 1)], 0)
    info = dict(exp=(ge[0], ge[-1]), single=(gs[0], gs[-1]), wr=gw, salu=gsal)
    assert gw[-1] < 128 + GB and gw[0] >= 128, info
    assert max(gs[:24]) < 128, info
    assert max(gs) < 128 + 32, info
    pre = [(g, 0, t) for (t, c, e, kb, qb), g in zip(exps, ge) if g < 128] + [(g, 1, t) for (t, c, e), g in zip(sit, gs) if g < 128]
    pre.sort(key=lambda x: (x[0], x[1]))
    XF = 192
    for i in range(4): a(f'v_mov_b32 v{XF+i}, s91')
    a(f's_add_u32 s74, s2, {sW}\ns_mov_b32 s75, {FB}')
    def pollv(lbl):
        a(f'buffer_load_dword v6, v5, s[{WS}:{WS+3}], s73 offen offset:2048 sc1')
        a(f's_cmp_lg_u32 s74, 0\ns_cbranch_scc1 {lbl}')
        for i in range(4): a(f'buffer_load_dword v{XF+i}, v5, s[{WS}:{WS+3}], s75 offen offset:{i*512} sc1')
        a(f'{lbl}:')
    half = len(pre) * o.get('pvpos', 50) // 100
    for g, k, t in pre[:half]: a(t)
    pollv('La_pv1')
    for g, k, t in pre[half:]: a(t)
    a(f's_mov_b32 {sCnt}, 0x100000')
    a('La_pollv:\ns_waitcnt vmcnt(0)')
    a(f'v_xor_b32 v6, s91, v6')
    for i in range(4): a(f'v_xor_b32 v{XF+4+i}, s91, v{XF+i}')
    a(f'v_or3_b32 v6, v6, v{XF+4}, v{XF+5}\nv_or3_b32 v6, v6, v{XF+6}, v{XF+7}\nv_cmp_ne_u32 vcc, 0, v6')
    a(f's_sub_u32 {sCnt}, {sCnt}, 1\ns_cbranch_scc1 La_readyv\ns_cbranch_vccz La_readyv\ns_sleep 1')
    pollv('La_pv2')
    a('s_branch La_pollv\nLa_readyv:')
    a(f's_cmp_lg_u32 s74, 0\ns_cbranch_scc1 La_noepoch\ns_mov_b64 exec, 1\ns_add_u32 s75, s75, 4096')
    a(f'buffer_store_dword v10, v9, s[{WS}:{WS+3}], s75 offen sc1')
    a('s_mov_b64 exec, -1\nLa_noepoch:')
    a(f's_lshl_b32 {sT}, {sW}, 12\ns_add_u32 {sT}, {sT}, {LP}\nv_add_u32 v{vPw}, {sT}, v1\nv_add_u32 v{vPr}, {LP}, v1')
    a(f's_mov_b32 {sCnt}, 15')
    stamp(7)
    a('.p2align 6\nLa_loop:')
    body = []
    for n in range(128):
        body.append(qk_mfma(n, lambda qb: vr(NM + 4 * qb, 4)) if n < 64 else pv_mfma(n - 64, 16))
        body += sc.gap[n] + sc.tail[n]
    body += [f's_cmp_lg_u32 {sCnt}, 0', 's_cbranch_scc1 La_loop']
    for t in body: a(t)
    errs = hazcheck.check(body + body, 'loop')
    stamp(8)
    post = [(g, 0, t) for (t, c, e, kb, qb), g in zip(exps, ge) if g >= 128] + [(g, 1, t) for (t, c, e), g in zip(sit, gs) if g >= 128]
    post += [(g, 2, t) for (t, c, e), g in zip(wr, gw) if g >= 128]
    post.sort(key=lambda x: (x[0], x[1]))
    for g, k, t in post:
        a(t)
        if k == 0: a('s_nop 0')
    a('s_waitcnt lgkmcnt(0)\ns_barrier')
    for u in range(2):
        for qb in range(4): a(pread(u, qb))
    for qb in range(4): a(f'v_mov_b32 v{T0+qb}, v{L+qb}')
    xreduce('v_add_f32', T0)
    a(f's_lshl_b32 {sT}, {sW}, 2\nv_add_u32 v{vT}, {sT}, v1')
    a(f'ds_write_b32 v{vT}, v{T0} offset:{LL}')
    a('s_waitcnt lgkmcnt(5)')
    for n in range(64):
        a(pv_mfma(n, 0))
        f = n // 4
        if n % 4 == 0:
            m = f - 1 + R
            if m < 16: a(kvload(m, sK)(m % R))
        if n % 4 == 3 and f < 15:
            a(f's_waitcnt vmcnt({max(0, min(R-2, 14-f))})')
        if n == 15: a('s_waitcnt lgkmcnt(0)\ns_barrier')
        if n in (17, 18, 19, 21): a(pread(2, (17, 18, 19, 21).index(n)))
        if n == 22: a(f'ds_read_b128 {vr(T0,4)}, v1 offset:{LL}')
        if n == 31: a('s_waitcnt lgkmcnt(0)')
        if n in (33, 34, 35, 37): a(pread(3, (33, 34, 35, 37).index(n)))
        if n == 38: a(f'v_add_f32 v{T0}, v{T0}, v{T0+1}\nv_add_f32 v{T0+2}, v{T0+2}, v{T0+3}')
        if n == 39: a(f'v_add_f32 v{T0}, v{T0}, v{T0+2}')
        if n == 41: a(f'v_rcp_f32 v{T0+1}, v{T0}')
        if n == 42: a(f's_lshl_b32 {sT}, {sW}, 8\nv_lshrrev_b32 v{vT}, 2, v1')
        if n == 43: a(f'v_add_u32 v{vT}, {sT}, v{vT}')
        if n == 45: a(f'ds_write_b32 v{vT}, v{T0+1} offset:{LL+1024}')
        if n == 46: a(f's_mov_b32 s72, 0x4f800000\nv_lshrrev_b32 v{vT}, 4, v1')
        if n == 47: a('s_waitcnt lgkmcnt(0)')
        if n == 49: a(f'v_cmp_nge_f32 vcc, s72, v{T0}')
        if n == 50: a(f'v_and_b32 v{vT}, 0x30, v{vT}')
        if n == 51: a(f'v_add_u32 v{vT}, {sT}, v{vT}')
        if n in (53, 54, 55, 57): qb = (53, 54, 55, 57).index(n); a(f'ds_read_b128 {vr(NM+4*qb,4)}, v{vT} offset:{LL+1024+qb*64}')
        if n == 58: a('v_lshlrev_b32 v8, 11, v14')
        if n == 59: a('v_lshl_add_u32 v8, v15, 3, v8')
        if n == 61: a(f's_lshl_b32 s74, s87, 15\ns_add_u32 s74, s74, s89')
        if n == 62: a(f's_lshl_b32 {sT}, {sW}, 7\ns_add_u32 s74, s74, {sT}')
    stamp(9)
    a(f's_cmp_lg_u32 {sSecond}, 0\ns_cbranch_scc1 La_store')
    a('s_cbranch_vccnz La_fallback')
    a('La_store:')
    a('s_waitcnt lgkmcnt(0)\ns_nop 3')
    for qb in range(4):
        for r in range(4):
            t = S + 8 * (r % 2) + 16 * (qb % 2)
            for i in range(4): a(f'v_mul_f32 v{t+i}, v{O+i*16+qb*4+r}, v{NM+4*qb+r}')
            a(f'v_cvt_pk_bf16_f32 v{t+4}, v{t}, v{t+1}\nv_cvt_pk_bf16_f32 v{t+5}, v{t+2}, v{t+3}')
            a(f'buffer_store_dwordx2 {vr(t+4,2)}, v8, s[{OUT}:{OUT+3}], s74 offen offset:{r*512}{o.get("out_aux","")}')
        if qb < 3: a('s_add_u32 s74, s74, 8192')
    if st:
        stamp(10)
        a('s_waitcnt vmcnt(0)')
        stamp(11)
        a('s_waitcnt lgkmcnt(0)')
        if o.get('probe'):
            i, j = [int(x) for x in str(o['probe']).split(':')]
            pw = o.get('pwg', 0)
            a(f's_cmp_lg_u32 s2, {pw}\ns_cbranch_scc1 La_done\ns_cmp_lg_u32 {sW}, 0\ns_cbranch_scc1 La_done')
            a(f's_mov_b32 s76, 400000\ns_sub_u32 s77, s{sreg(j)}, s{sreg(i)}\ns_lshl_b32 s77, s77, 2\ns_add_u32 s77, s77, 10000')
            a(f'La_spin:\ns_memrealtime s[74:75]\ns_waitcnt lgkmcnt(0)\ns_sub_u32 s74, s74, s{sreg(0)}\ns_sub_u32 s76, s76, 1\ns_cmp_eq_u32 s76, 0\ns_cbranch_scc1 La_done')
            a('s_cmp_lt_u32 s74, s77\ns_cbranch_scc1 La_spin')
        else:
            a(f's_lshl_b32 s72, s2, 2\ns_add_u32 s72, s72, {sW}\ns_lshl_b32 s72, s72, 7\ns_add_u32 s72, s72, {STAMP_OFF}')
            a(f's_mov_b32 s{WS+2}, 0x10000000\nv_mov_b32 v8, 0')
            for i in range(12):
                a(f'v_mov_b32 v{S+2*i}, s{sreg(i)}\nv_mov_b32 v{S+2*i+1}, s{sreg(i)+1}')
                a(f'buffer_store_dwordx2 {vr(S+2*i,2)}, v8, s[{WS}:{WS+3}], s72 offen offset:{8*i}')
    a('La_done:\ns_endpgm')
    a('La_fallback:')
    a(f's_mov_b32 {sSecond}, 1\ns_mov_b32 {sK}, {sKb}\ns_mov_b32 {sCnt}, 32')
    a('s_waitcnt vmcnt(0) lgkmcnt(0)')
    a('La_fb_loop:')
    for s in range(8): a(kvload(s, sK)(s))
    a('s_waitcnt vmcnt(0)')
    for s in range(8):
        for qb in range(4):
            D = vr(S + qb * 4, 4)
            a(f'v_mfma_f32_16x16x32_bf16 {D}, {ar(aR+4*s,4)}, {ar(aQ+(qb*8+s)*4,4)}, {D if s else "0"}')
    a(f's_add_u32 {sK}, {sK}, 8192\ns_sub_u32 {sCnt}, {sCnt}, 1\ns_nop 7')
    for qb in range(4):
        x = S + qb * 4
        a(f'v_max3_f32 v{MF+qb}, v{x}, v{x+1}, v{MF+qb}\nv_max3_f32 v{MF+qb}, v{x+2}, v{x+3}, v{MF+qb}')
    a(f's_cmp_lg_u32 {sCnt}, 0\ns_cbranch_scc1 La_fb_loop')
    start_stream()
    for n in range(R - 1): a(kvload(n, sK)(n))
    a('v_lshlrev_b32 v5, 2, v0')
    a('s_barrier\ns_branch La_restart')
    return errs

HEADER = open('cdna_kernels/' + NAME + '.s.ref').read().split('; Override launch')[0]

def gen(o):
    if o.get('probe'): o['stamps'] = 1
    a = Asm()
    a(HEADER.rstrip('\n'))
    a('; @launch grid=(256,1,1) block=(256,1,1) lds=35840')
    a('.amdgcn_target "amdgcn-amd-amdhsa--gfx950"\n.text')
    errs = gen_kernel(a, o)
    errs += hazcheck.check(a.lines, 'all')
    a(kernel_desc(f'{NAME}_kernel', 512, 102, 256))
    return a.text(), errs

if __name__ == '__main__':
    o = {}
    outp = None
    for x in sys.argv[1:]:
        if '=' in x:
            k, v = x.split('=', 1)
            try: v = int(v)
            except ValueError: v = v.replace('_', ' ')
            o[k] = v
        else: outp = x
    txt, errs = gen(o)
    for e in errs: print(e)
    open(outp or 'f2.s', 'w').write(txt)
```

```python
import sys
s = open(sys.argv[1]).read()
K = 'standalone__kv_cache_quant_pre_rope_vs_post_rope__prompt_kernel:\n'
s = s.replace(K + 's_cmp_ge_u32 s2, 256\ns_cbranch_scc1 La_done\n', K + 's_cmp_ge_u32 s2, 256\ns_cbranch_scc1 La_done\ns_memrealtime s[96:97]\n', 1)
tail = '''s_waitcnt vmcnt(0)
s_memrealtime s[98:99]
s_waitcnt lgkmcnt(0)
s_lshl_b32 s72, s2, 2
s_add_u32 s72, s72, s64
s_lshl_b32 s72, s72, 3
s_add_u32 s72, s72, 0x10c0000
v_mov_b32 v8, 0
v_mov_b32 v36, s96
v_mov_b32 v37, s98
buffer_store_dwordx2 v[36:37], v8, s[8:11], s72 offen sc1
s_waitcnt vmcnt(0)
s_cmp_lg_u32 s2, 128
s_cbranch_scc1 La_done
s_cmp_lg_u32 s64, 0
s_cbranch_scc1 La_done
s_mov_b32 s46, 400000
Lx_a:
s_memrealtime s[44:45]
s_waitcnt lgkmcnt(0)
s_sub_u32 s44, s44, s96
s_sub_u32 s46, s46, 1
s_cmp_eq_u32 s46, 0
s_cbranch_scc1 La_done
s_cmp_lt_u32 s44, 6000
s_cbranch_scc1 Lx_a
v_lshrrev_b32 v8, 1, v0
s_mov_b32 s72, 0x10c0600
v_mov_b32 v40, s96
v_mov_b32 v41, s96
'''
for i in range(13):
    tail += f'buffer_load_dwordx2 v[36:37], v8, s[8:11], s72 offen sc1\ns_add_u32 s72, s72, 512\ns_waitcnt vmcnt(0)\nv_min_u32 v40, v40, v36\nv_max_u32 v41, v41, v37\n'
tail += 's_mov_b32 s48, s96\ns_mov_b32 s49, s96\ns_nop 1\n'
for l in range(64):
    tail += f'v_readlane_b32 s50, v40, {l}\nv_readlane_b32 s51, v41, {l}\ns_nop 1\ns_min_u32 s48, s48, s50\ns_max_u32 s49, s49, s51\n'
tail += '''s_sub_u32 s47, s49, s48
s_lshl_b32 s47, s47, 3
s_add_u32 s47, s47, 10000
Lx_b:
s_memrealtime s[44:45]
s_waitcnt lgkmcnt(0)
s_sub_u32 s44, s44, s96
s_sub_u32 s46, s46, 1
s_cmp_eq_u32 s46, 0
s_cbranch_scc1 La_done
s_cmp_lt_u32 s44, s47
s_cbranch_scc1 Lx_b
'''
assert s.count('La_done:\ns_endpgm') == 1
s = s.replace('La_done:\ns_endpgm', tail + 'La_done:\ns_endpgm')
open(sys.argv[2], 'w').write(s)
```
